```python
import torch

def _softmax(x, axis=-1):
    return torch.softmax(x, dim=axis)
def _gelu(x):
    return torch.nn.functional.gelu(x, approximate="tanh")
def _silu(x):
    return torch.nn.functional.silu(x)
def _sigmoid(x):
    return torch.sigmoid(x)
def _layernorm(x, axis=-1, eps=1e-5):
    m = x.mean(dim=axis, keepdim=True)
    v = x.var(dim=axis, keepdim=True, unbiased=False)
    return (x - m) / torch.sqrt(v + eps)
def _scatter_add(tgt, idx, src, axis=0):
    return tgt.clone().index_add_(axis, idx, src)
def _segment_sum(src, seg, n):
    out = torch.zeros((n,) + src.shape[1:], dtype=src.dtype)
    return out.index_add_(0, seg, src)
def _pad(x, pw):
    flat = tuple(v for pair in reversed(pw) for v in pair)
    return torch.nn.functional.pad(x, flat)

kernel_name = 'standalone__sliding_block_cached__decode'

def setup_inputs():

    _w = (lambda a: (lambda t: t.to(torch.bfloat16) if t.is_floating_point() else t)(torch.as_tensor(a)))
    B, Sq, D = 1, 1, 512
    Hq, Hkv, Sk, Dh = 32, 8, 32768, 128
    assert Hq % Hkv == 0, (Hq, Hkv)
    return {
        "x": _w((lambda *s: torch.randn(*s, dtype=torch.bfloat16) * 0.8)(B, Sq, D)),
        "k_cache": _w((lambda *s: torch.randn(*s, dtype=torch.bfloat16) * 0.8)(B, Hkv, Sk, Dh)),
        "v_cache": _w((lambda *s: torch.randn(*s, dtype=torch.bfloat16) * 0.05)(B, Hkv, Sk, Dh)),
        "wq": _w((lambda *s: torch.randn(*s, dtype=torch.bfloat16) * 0.8)(D, Hq * Dh) * (D ** -0.5)),
        "wo": _w((lambda *s: torch.randn(*s, dtype=torch.bfloat16) * 0.05)(Hq * Dh, D) * ((Hq * Dh) ** -0.5)),
    }

def reference(x, k_cache, v_cache, wq, wo):
    B, Sq, D = x.shape
    Hq, Dh = 32, 128
    Hkv, Sk = k_cache.shape[1], k_cache.shape[2]
    W = min(4096, max(256, Sk // 4))
    rep = Hq // Hkv
    q = (lambda x, *d: x.permute(*d))((x @ wq).reshape(B, Sq, Hq, Dh), 0, 2, 1, 3)
    k = (lambda x, n, axis: torch.repeat_interleave(x, n, dim=axis))(k_cache[:, :, Sk - W:, :], rep, axis=1)
    v = (lambda x, n, axis: torch.repeat_interleave(x, n, dim=axis))(v_cache[:, :, Sk - W:, :], rep, axis=1)
    scores = torch.einsum("bhqd,bhkd->bhqk", q, k) * (Dh ** -0.5)
    p = _softmax(scores, axis=-1)
    o = torch.einsum("bhqk,bhkd->bhqd", p, v)
    return (lambda x, *d: x.permute(*d))(o, 0, 2, 1, 3).reshape(B, Sq, Hq * Dh) @ wo
```

```python
import sys

OUT = sys.argv[1] if len(sys.argv) > 1 else "standalone__sliding_block_cached__decode.s"

L = []
def E(s=""):
    L.append(s)

WS_NONCE = 0
WS_QP = 0x10000
WS_ML = 0x30000
WS_AP = 0x40000
WS_OP = 0x140000
WS_SIZE = 0x160000

LDS_V = 0
LDS_Q = 32768
LDS_RED = 33792
LDS_OPART = 34816
LDS_MLP = 43008
LDS_O3 = 43264
LDS_SIZE = 45312

POLL_MAX = 200000

hdr = open("standalone__sliding_block_cached__decode.s.ref").read().split("\n")
for ln in hdr:
    if ln.startswith("; @launch"):
        break
    E(ln)
E(f"; @launch grid=(256,1,1) block=(512,1,1) lds={LDS_SIZE}")
E('.amdgcn_target "amdgcn-amd-amdhsa--gfx950"')
E(".text")
E(".globl standalone__sliding_block_cached__decode_kernel")
E(".p2align 8")
E(".type standalone__sliding_block_cached__decode_kernel,@function")
E("standalone__sliding_block_cached__decode_kernel:")

SX, SK, SV, SWQ, SWO, SOUT, SWS = 4, 8, 12, 16, 20, 24, 28
S_TAG, S_WAVE = 32, 33
def srd(base, ptr_lo, nbytes):
    E(f"  s_mov_b32 s{base}, s{ptr_lo}")
    E(f"  s_and_b32 s{base+1}, s{ptr_lo+1}, 0xffff")
    E(f"  s_mov_b32 s{base+2}, {nbytes}")
    E(f"  s_mov_b32 s{base+3}, 0x00020000")

E("  s_cmp_ge_u32 s2, 256")
E("  s_cbranch_scc1 L_end")
E("  s_load_dwordx16 s[36:51], s[0:1], 0")
E("  v_lshrrev_b32 v1, 6, v0")
E("  v_and_b32 v0, 63, v0            ; lane")
E("  s_nop 0")
E(f"  v_readfirstlane_b32 s{S_WAVE}, v1")
E("  s_waitcnt lgkmcnt(0)")
E(f"  s_load_dword s{S_TAG}, s[50:51], {WS_NONCE}")
srd(SX, 36, 1024)
srd(SK, 38, 67108864)
srd(SV, 40, 67108864)
srd(SWQ, 42, 4194304)
srd(SWO, 44, 4194304)
srd(SOUT, 46, 1024)
srd(SWS, 50, WS_SIZE)
E(f"  s_cmp_ge_u32 s{S_WAVE}, 4")
E("  s_cbranch_scc1 L_bwave")

def gemv(wbase, xb, acc, tmp):
    for i in range(4):
        for k in range(4):
            w = wbase + 4 * i + k
            E(f"  v_lshlrev_b32 v{tmp}, 16, v{w}")
            E(f"  v_and_b32 v{tmp+1}, 0xffff0000, v{w}")
            if i == 0:
                E(f"  v_mul_f32 v{acc+2*k}, v{xb+i}, v{tmp}")
                E(f"  v_mul_f32 v{acc+2*k+1}, v{xb+i}, v{tmp+1}")
            else:
                E(f"  v_fmac_f32 v{acc+2*k}, v{xb+i}, v{tmp}")
                E(f"  v_fmac_f32 v{acc+2*k+1}, v{xb+i}, v{tmp+1}")
    E("  s_nop 1")
    for k in range(8):
        E(f"  v_add_f32_dpp v{acc+k}, v{acc+k}, v{acc+k} row_ror:8 row_mask:0xf bank_mask:0xf")
    E("  s_nop 1")
    for k in range(4):
        E(f"  v_permlane16_swap_b32 v{acc+2*k}, v{acc+2*k+1}")
    E("  s_nop 1")
    for k in range(4):
        E(f"  v_add_f32 v{acc+2*k}, v{acc+2*k}, v{acc+2*k+1}")
    E("  s_nop 1")
    E(f"  v_permlane32_swap_b32 v{acc}, v{acc+2}")
    E(f"  v_permlane32_swap_b32 v{acc+4}, v{acc+6}")
    E("  s_nop 1")
    E(f"  v_add_f32 v{acc}, v{acc}, v{acc+2}")
    E(f"  v_add_f32 v{acc+4}, v{acc+4}, v{acc+6}")

E("L_awave:")
E("  v_lshrrev_b32 v2, 3, v0")
E("  v_and_b32 v3, 7, v0")
E("  s_and_b32 s52, s2, 63           ; cg1")
E("  s_lshr_b32 s53, s2, 6           ; rg1")
E("  s_lshl_b32 s54, s53, 7          ; rg1*128")
E(f"  s_lshl_b32 s55, s{S_WAVE}, 5    ; a*32")
E("  s_add_u32 s54, s54, s55")
E("  v_lshlrev_b32 v4, 2, v2         ; 4*(lane>>3)")
E("  v_add_u32 v4, s54, v4           ; row0")
E("  v_lshlrev_b32 v5, 1, v4")
E(f"  buffer_load_dwordx2 v[6:7], v5, s[{SX}:{SX+3}], 0 offen")
E("  v_lshlrev_b32 v5, 13, v4        ; row0*8192")
E("  v_lshl_add_u32 v5, v3, 4, v5    ; + (lane&7)*16")
E("  s_lshl_b32 s55, s52, 7          ; cg1*128")
E("  v_add_u32 v5, s55, v5")
E("  s_movk_i32 s56, 0x2000")
E("  s_movk_i32 s57, 0x4000")
E("  s_movk_i32 s58, 0x6000")
WQ = 16
E(f"  buffer_load_dwordx4 v[{WQ}:{WQ+3}], v5, s[{SWQ}:{SWQ+3}], 0 offen")
E(f"  buffer_load_dwordx4 v[{WQ+4}:{WQ+7}], v5, s[{SWQ}:{SWQ+3}], s56 offen")
E(f"  buffer_load_dwordx4 v[{WQ+8}:{WQ+11}], v5, s[{SWQ}:{SWQ+3}], s57 offen")
E(f"  buffer_load_dwordx4 v[{WQ+12}:{WQ+15}], v5, s[{SWQ}:{SWQ+3}], s58 offen")
E("  v_lshrrev_b32 v8, 4, v0")
E("  v_lshl_add_u32 v8, v3, 3, v8")
E("  v_lshlrev_b32 v8, 2, v8")
E(f"  s_lshl_b32 s55, s{S_WAVE}, 8")
E(f"  s_add_u32 s55, s55, {LDS_RED}")
E("  v_add_u32 v8, s55, v8")
E("  s_waitcnt vmcnt(0) lgkmcnt(0)")
E(f"  s_add_u32 s{S_TAG}, s{S_TAG}, 1")
XB = 10
E(f"  v_lshlrev_b32 v{XB}, 16, v6")
E(f"  v_and_b32 v{XB+1}, 0xffff0000, v6")
E(f"  v_lshlrev_b32 v{XB+2}, 16, v7")
E(f"  v_and_b32 v{XB+3}, 0xffff0000, v7")
ACC = 32
gemv(WQ, XB, ACC, 14)
E(f"  ds_write_b32 v8, v{ACC}")
E(f"  ds_write_b32 v8, v{ACC+4} offset:16")
E("  s_waitcnt lgkmcnt(0)")
E("  s_barrier                        ; Bar1")
E(f"  s_cmp_lg_u32 s{S_WAVE}, 0")
E("  s_cbranch_scc1 L_a_nopub1")
E("  v_cmp_gt_u32 vcc, 32, v0")
E("  s_and_saveexec_b64 s[60:61], vcc")
E("  v_lshlrev_b32 v9, 3, v0         ; 2t*4")
E(f"  v_add_u32 v9, {LDS_RED}, v9")
E("  ds_read_b64 v[40:41], v9")
E("  ds_read_b64 v[42:43], v9 offset:256")
E("  ds_read_b64 v[44:45], v9 offset:512")
E("  ds_read_b64 v[46:47], v9 offset:768")
E("  s_lshl_b32 s55, s53, 15")
E("  s_lshl_b32 s59, s52, 9")
E("  s_add_u32 s55, s55, s59")
E(f"  s_add_u32 s55, s55, {WS_QP}")
E("  v_lshlrev_b32 v9, 4, v0")
E("  v_add_u32 v9, s55, v9")
E(f"  v_mov_b32 v49, s{S_TAG}")
E(f"  v_mov_b32 v51, s{S_TAG}")
E("  s_waitcnt lgkmcnt(0)")
E("  v_add_f32 v40, v40, v42")
E("  v_add_f32 v41, v41, v43")
E("  v_add_f32 v44, v44, v46")
E("  v_add_f32 v45, v45, v47")
E("  v_add_f32 v48, v40, v44")
E("  v_add_f32 v50, v41, v45")
E(f"  buffer_store_dwordx4 v[48:51], v9, s[{SWS}:{SWS+3}], 0 offen sc1")
E("  s_mov_b64 exec, s[60:61]")
E("L_a_nopub1:")
E("  s_and_b32 s52, s2, 7            ; g")
E("  s_lshl_b32 s55, s52, 12         ; g*512*8")
E(f"  s_lshl_b32 s59, s{S_WAVE}, 10   ; a*64*16")
E("  s_add_u32 s55, s55, s59")
E(f"  s_add_u32 s55, s55, {WS_QP}")
E("  v_lshlrev_b32 v9, 4, v0")
E("  v_add_u32 v9, s55, v9")
E("  s_mov_b32 s56, 0x8000")
E("  s_mov_b32 s57, 0x10000")
E("  s_mov_b32 s58, 0x18000")
E(f"  s_mov_b32 s62, {POLL_MAX}")
E("L_poll1:")
E(f"  buffer_load_dwordx4 v[40:43], v9, s[{SWS}:{SWS+3}], 0 offen sc1")
E(f"  buffer_load_dwordx4 v[44:47], v9, s[{SWS}:{SWS+3}], s56 offen sc1")
E(f"  buffer_load_dwordx4 v[48:51], v9, s[{SWS}:{SWS+3}], s57 offen sc1")
E(f"  buffer_load_dwordx4 v[52:55], v9, s[{SWS}:{SWS+3}], s58 offen sc1")
E("  s_waitcnt vmcnt(0)")
E(f"  v_xor_b32 v56, s{S_TAG}, v41")
for r in (43, 45, 47, 49, 51, 53, 55):
    E(f"  v_xor_b32 v57, s{S_TAG}, v{r}")
    E("  v_or_b32 v56, v56, v57")
E("  v_cmp_ne_u32 vcc, 0, v56")
E("  s_cbranch_vccz L_poll1_done")
E("  s_sleep 1")
E("  s_sub_u32 s62, s62, 1")
E("  s_cmp_lg_u32 s62, 0")
E("  s_cbranch_scc1 L_poll1")
E("L_poll1_done:")
E("  v_add_f32 v40, v40, v44")
E("  v_add_f32 v42, v42, v46")
E("  v_add_f32 v48, v48, v52")
E("  v_add_f32 v50, v50, v54")
E("  v_add_f32 v40, v40, v48")
E("  v_add_f32 v42, v42, v50")
E("  v_cvt_pk_bf16_f32 v40, v40, v42")
E(f"  s_lshl_b32 s55, s{S_WAVE}, 8")
E(f"  s_add_u32 s55, s55, {LDS_Q}")
E("  v_lshlrev_b32 v9, 2, v0")
E("  v_add_u32 v9, s55, v9")
E("  ds_write_b32 v9, v40")
E("  s_waitcnt lgkmcnt(0)")
E("  s_barrier")
E("  s_lshr_b32 s53, s2, 3           ; h3")
E("  s_lshl_b32 s54, s53, 7")
E(f"  s_lshl_b32 s55, s{S_WAVE}, 5")
E("  s_add_u32 s54, s54, s55")
E("  v_lshlrev_b32 v4, 2, v2")
E("  v_add_u32 v4, s54, v4           ; row0")
E("  v_lshlrev_b32 v5, 10, v4        ; row0*1024")
E("  v_lshl_add_u32 v5, v3, 4, v5")
E("  s_lshl_b32 s55, s52, 7")
E("  v_add_u32 v5, s55, v5")
WO = 16
E(f"  buffer_load_dwordx4 v[{WO}:{WO+3}], v5, s[{SWO}:{SWO+3}], 0 offen")
E(f"  buffer_load_dwordx4 v[{WO+4}:{WO+7}], v5, s[{SWO}:{SWO+3}], 0 offen offset:1024")
E(f"  buffer_load_dwordx4 v[{WO+8}:{WO+11}], v5, s[{SWO}:{SWO+3}], 0 offen offset:2048")
E(f"  buffer_load_dwordx4 v[{WO+12}:{WO+15}], v5, s[{SWO}:{SWO+3}], 0 offen offset:3072")
E("  s_barrier")
E("  v_and_b32 v9, 31, v0")
E("  v_lshlrev_b32 v9, 4, v9")
E("  s_lshl_b32 s55, s53, 9          ; h3*32*16")
E(f"  s_add_u32 s55, s55, {WS_ML}")
E("  v_add_u32 v9, s55, v9")
E("  s_lshl_b32 s55, s53, 15")
E(f"  s_lshl_b32 s59, s{S_WAVE}, 13")
E("  s_add_u32 s55, s55, s59")
E(f"  s_add_u32 s55, s55, {WS_AP}")
E("  v_lshlrev_b32 v15, 4, v0")
E("  v_add_u32 v15, s55, v15")
E("  s_movk_i32 s56, 0x1000")
E(f"  s_mov_b32 s62, {POLL_MAX}")
E("L_poll2a:")
E(f"  buffer_load_dwordx4 v[40:43], v9, s[{SWS}:{SWS+3}], 0 offen sc1")
E("  s_waitcnt vmcnt(0)")
E(f"  v_xor_b32 v56, s{S_TAG}, v41")
E(f"  v_xor_b32 v57, s{S_TAG}, v43")
E("  v_or_b32 v56, v56, v57")
E("  v_cmp_ne_u32 vcc, 0, v56")
E("  s_cbranch_vccz L_poll2a_done")
E("  s_sleep 1")
E("  s_sub_u32 s62, s62, 1")
E("  s_cmp_lg_u32 s62, 0")
E("  s_cbranch_scc1 L_poll2a")
E("L_poll2a_done:")
AP = 64
E(f"  s_mov_b32 s62, {POLL_MAX}")
E("L_poll2b:")
for k in range(8):
    so = "0" if k < 4 else "s56"
    E(f"  buffer_load_dwordx4 v[{AP+4*k}:{AP+4*k+3}], v15, s[{SWS}:{SWS+3}], {so} offen offset:{(k%4)*1024} sc1")
E("  v_mov_b32 v44, v40")
E("  s_nop 1")
E("  v_max_f32_dpp v44, v44, v44 quad_perm:[1,0,3,2] row_mask:0xf bank_mask:0xf")
E("  s_nop 1")
E("  v_max_f32_dpp v44, v44, v44 quad_perm:[2,3,0,1] row_mask:0xf bank_mask:0xf")
E("  s_nop 1")
E("  v_max_f32_dpp v44, v44, v44 row_half_mirror row_mask:0xf bank_mask:0xf")
E("  s_nop 1")
E("  v_max_f32_dpp v44, v44, v44 row_mirror row_mask:0xf bank_mask:0xf")
E("  v_mov_b32 v45, v44")
E("  s_nop 1")
E("  v_permlane16_swap_b32 v44, v45")
E("  s_nop 1")
E("  v_max_f32 v44, v44, v45")
E("  v_sub_f32 v46, v40, v44")
E("  v_exp_f32 v46, v46              ; w_s")
E("  s_nop 0")
E("  v_mul_f32 v47, v46, v42         ; w_s*l_s")
E("  s_nop 1")
E("  v_add_f32_dpp v47, v47, v47 quad_perm:[1,0,3,2] row_mask:0xf bank_mask:0xf")
E("  s_nop 1")
E("  v_add_f32_dpp v47, v47, v47 quad_perm:[2,3,0,1] row_mask:0xf bank_mask:0xf")
E("  s_nop 1")
E("  v_add_f32_dpp v47, v47, v47 row_half_mirror row_mask:0xf bank_mask:0xf")
E("  s_nop 1")
E("  v_add_f32_dpp v47, v47, v47 row_mirror row_mask:0xf bank_mask:0xf")
E("  v_mov_b32 v45, v47")
E("  s_nop 1")
E("  v_permlane16_swap_b32 v47, v45")
E("  s_nop 1")
E("  v_add_f32 v47, v47, v45         ; L")
E("  v_rcp_f32 v47, v47")
E("  s_nop 0")
E("  v_mul_f32 v46, v46, v47         ; f_s = w_s / L")
E(f"  s_lshl_b32 s55, s{S_WAVE}, 3    ; 8a")
E("  s_nop 0")
for k in range(8):
    E(f"  s_add_u32 s59, s55, {k}")
    E("  s_nop 0")
    E(f"  v_readlane_b32 s{64+k}, v46, s59")
E("  s_waitcnt vmcnt(0)")
E(f"  v_xor_b32 v56, s{S_TAG}, v{AP+1}")
for k in range(8):
    for j in (1, 3):
        if k == 0 and j == 1:
            continue
        E(f"  v_xor_b32 v57, s{S_TAG}, v{AP+4*k+j}")
        E("  v_or_b32 v56, v56, v57")
E("  v_cmp_ne_u32 vcc, 0, v56")
E("  s_cbranch_vccz L_poll2b_done")
E("  s_sleep 1")
E("  s_sub_u32 s62, s62, 1")
E("  s_cmp_lg_u32 s62, 0")
E("  s_cbranch_scc1 L_poll2b")
E("L_poll2b_done:")
E(f"  v_mul_f32 v48, s64, v{AP}")
E(f"  v_mul_f32 v49, s64, v{AP+2}")
for k in range(1, 8):
    E(f"  v_fmac_f32 v48, s{64+k}, v{AP+4*k}")
    E(f"  v_fmac_f32 v49, s{64+k}, v{AP+4*k+2}")
E(f"  s_lshl_b32 s55, s{S_WAVE}, 9")
E(f"  s_add_u32 s55, s55, {LDS_O3}")
E("  v_lshlrev_b32 v9, 3, v0")
E("  v_add_u32 v9, s55, v9")
E("  ds_write_b64 v9, v[48:49]")
E("  s_waitcnt lgkmcnt(0)")
E("  s_barrier                        ; Bar4")
E("  v_lshlrev_b32 v9, 4, v2         ; (lane>>3)*16")
E(f"  s_lshl_b32 s55, s{S_WAVE}, 7    ; a*32*4")
E(f"  s_add_u32 s55, s55, {LDS_O3}")
E("  v_add_u32 v9, s55, v9")
E("  ds_read_b128 v[40:43], v9")
E("  ds_read_b128 v[44:47], v9 offset:512")
E("  ds_read_b128 v[48:51], v9 offset:1024")
E("  ds_read_b128 v[52:55], v9 offset:1536")
E("  s_waitcnt lgkmcnt(0)")
for j in range(4):
    E(f"  v_add_f32 v{40+j}, v{40+j}, v{44+j}")
    E(f"  v_add_f32 v{48+j}, v{48+j}, v{52+j}")
for j in range(4):
    E(f"  v_add_f32 v{40+j}, v{40+j}, v{48+j}")
E("  v_cvt_pk_bf16_f32 v44, v40, v41")
E("  v_cvt_pk_bf16_f32 v45, v42, v43")
E(f"  v_lshlrev_b32 v{XB}, 16, v44")
E(f"  v_and_b32 v{XB+1}, 0xffff0000, v44")
E(f"  v_lshlrev_b32 v{XB+2}, 16, v45")
E(f"  v_and_b32 v{XB+3}, 0xffff0000, v45")
gemv(WO, XB, ACC, 14)
E(f"  ds_write_b32 v8, v{ACC}")
E(f"  ds_write_b32 v8, v{ACC+4} offset:16")
E("  s_waitcnt lgkmcnt(0)")
E("  s_barrier                        ; Bar5")
E(f"  s_cmp_lg_u32 s{S_WAVE}, 0")
E("  s_cbranch_scc1 L_end")
E("  v_cmp_gt_u32 vcc, 32, v0")
E("  s_and_saveexec_b64 s[60:61], vcc")
E("  v_lshlrev_b32 v9, 3, v0")
E(f"  v_add_u32 v9, {LDS_RED}, v9")
E("  ds_read_b64 v[40:41], v9")
E("  ds_read_b64 v[42:43], v9 offset:256")
E("  ds_read_b64 v[44:45], v9 offset:512")
E("  ds_read_b64 v[46:47], v9 offset:768")
E("  s_lshl_b32 s55, s52, 14         ; cg3*4*32*128")
E("  s_lshl_b32 s59, s53, 7          ; h3*128")
E("  s_add_u32 s55, s55, s59")
E(f"  s_add_u32 s55, s55, {WS_OP}")
E("  v_lshlrev_b32 v9, 12, v2        ; (t>>3)*4096")
E("  v_lshl_add_u32 v9, v3, 4, v9    ; + (t&7)*16")
E("  v_add_u32 v9, s55, v9")
E(f"  v_mov_b32 v49, s{S_TAG}")
E(f"  v_mov_b32 v51, s{S_TAG}")
E("  s_waitcnt lgkmcnt(0)")
E("  v_add_f32 v40, v40, v42")
E("  v_add_f32 v41, v41, v43")
E("  v_add_f32 v44, v44, v46")
E("  v_add_f32 v45, v45, v47")
E("  v_add_f32 v48, v40, v44")
E("  v_add_f32 v50, v41, v45")
E(f"  buffer_store_dwordx4 v[48:51], v9, s[{SWS}:{SWS+3}], 0 offen sc1")
E("  s_mov_b64 exec, s[60:61]")
E("  s_cmp_ge_u32 s2, 32")
E("  s_cbranch_scc1 L_end")
E("  s_lshl_b32 s55, s2, 12")
E(f"  s_add_u32 s55, s55, {WS_OP}")
E("  v_lshlrev_b32 v9, 4, v0")
E("  v_add_u32 v9, s55, v9")
E(f"  s_mov_b32 s62, {POLL_MAX}")
E("L_poll3:")
for k in range(4):
    E(f"  buffer_load_dwordx4 v[{40+4*k}:{43+4*k}], v9, s[{SWS}:{SWS+3}], 0 offen offset:{k*1024} sc1")
E("  s_waitcnt vmcnt(0)")
E(f"  v_xor_b32 v56, s{S_TAG}, v41")
for r in (43, 45, 47, 49, 51, 53, 55):
    E(f"  v_xor_b32 v57, s{S_TAG}, v{r}")
    E("  v_or_b32 v56, v56, v57")
E("  v_cmp_ne_u32 vcc, 0, v56")
E("  s_cbranch_vccz L_poll3_done")
E("  s_sleep 1")
E("  s_sub_u32 s62, s62, 1")
E("  s_cmp_lg_u32 s62, 0")
E("  s_cbranch_scc1 L_poll3")
E("L_poll3_done:")
E("  v_add_f32 v40, v40, v44")
E("  v_add_f32 v42, v42, v46")
E("  v_add_f32 v48, v48, v52")
E("  v_add_f32 v50, v50, v54")
E("  v_add_f32 v40, v40, v48")
E("  v_add_f32 v42, v42, v50")
E("  s_nop 1")
E("  v_add_f32_dpp v40, v40, v40 row_ror:8 row_mask:0xf bank_mask:0xf")
E("  v_add_f32_dpp v42, v42, v42 row_ror:8 row_mask:0xf bank_mask:0xf")
E("  v_mov_b32 v41, v40")
E("  v_mov_b32 v43, v42")
E("  s_nop 1")
E("  v_permlane16_swap_b32 v40, v41")
E("  v_permlane16_swap_b32 v42, v43")
E("  s_nop 1")
E("  v_add_f32 v40, v40, v41")
E("  v_add_f32 v42, v42, v43")
E("  v_mov_b32 v41, v40")
E("  v_mov_b32 v43, v42")
E("  s_nop 1")
E("  v_permlane32_swap_b32 v40, v41")
E("  v_permlane32_swap_b32 v42, v43")
E("  s_nop 1")
E("  v_add_f32 v40, v40, v41")
E("  v_add_f32 v42, v42, v43")
E("  v_cvt_pk_bf16_f32 v40, v40, v42")
E("  v_cmp_gt_u32 vcc, 8, v0")
E("  s_and_saveexec_b64 s[60:61], vcc")
E("  s_lshl_b32 s55, s2, 5           ; r*16 cols*2B")
E("  v_lshlrev_b32 v9, 2, v0")
E("  v_add_u32 v9, s55, v9")
E(f"  buffer_store_dword v40, v9, s[{SOUT}:{SOUT+3}], 0 offen")
E("  s_mov_b64 exec, s[60:61]")
E("  s_cmp_lg_u32 s2, 0")
E("  s_cbranch_scc1 L_end")
E("  v_cmp_gt_u32 vcc, 1, v0")
E("  s_and_saveexec_b64 s[60:61], vcc")
E(f"  v_mov_b32 v40, s{S_TAG}")
E(f"  v_mov_b32 v9, {WS_NONCE}")
E(f"  buffer_store_dword v40, v9, s[{SWS}:{SWS+3}], 0 offen sc1")
E("  s_mov_b64 exec, s[60:61]")
E("  s_branch L_end")

E("L_bwave:")
E(f"  s_sub_u32 s{S_WAVE}, s{S_WAVE}, 4   ; b")
E("  s_and_b32 s52, s2, 7            ; g")
E("  s_lshr_b32 s53, s2, 3           ; s (split)")
E("  s_lshl_b32 s54, s52, 15")
E("  s_add_u32 s54, s54, 28672")
E("  s_lshl_b32 s55, s53, 7")
E("  s_add_u32 s54, s54, s55")
E(f"  s_lshl_b32 s55, s{S_WAVE}, 5")
E("  s_add_u32 s54, s54, s55")
E("  s_lshl_b32 s54, s54, 8")
E("  v_and_b32 v2, 15, v0            ; l&15")
E("  v_lshrrev_b32 v3, 4, v0         ; c = l>>4")
E("  v_lshlrev_b32 v4, 8, v2")
E("  v_lshl_add_u32 v4, v3, 4, v4")
E("  v_add_u32 v4, s54, v4")
E("  s_movk_i32 s56, 0x1000")
KR = 16
for tt in range(2):
    for ks in range(4):
        so = "0" if tt == 0 else "s56"
        r = KR + (tt * 4 + ks) * 4
        E(f"  buffer_load_dwordx4 v[{r}:{r+3}], v4, s[{SK}:{SK+3}], {so} offen offset:{ks*64}")
E("  v_lshlrev_b32 v5, 1, v3")
E("  v_xor_b32 v5, v5, v2            ; chunk_even")
E("  v_lshlrev_b32 v6, 8, v3         ; c*256")
E("  v_lshl_add_u32 v7, v5, 4, v6")
E("  v_add_u32 v7, s54, v7")
E("  v_xor_b32 v5, 8, v5")
E("  v_lshl_add_u32 v8, v5, 4, v6")
E("  v_add_u32 v8, s54, v8")
E("  v_add_u32 v8, 0x400, v8")
E(f"  s_lshl_b32 s57, s{S_WAVE}, 13")
for i in range(8):
    E(f"  s_add_u32 m0, s57, {i*1024}")
    E(f"  s_movk_i32 s58, {(i>>1)*2048}")
    E(f"  buffer_load_dwordx4 v{7 + (i&1)}, s[{SV}:{SV+3}], s58 offen lds")
E("  v_and_b32 v9, 3, v0")
E("  v_lshlrev_b32 v9, 8, v9")
E("  v_lshl_add_u32 v9, v3, 4, v9")
E(f"  v_add_u32 v9, {LDS_Q}, v9")
E("  v_lshrrev_b32 v10, 2, v2        ; r")
E("  v_lshl_add_u32 v10, v3, 2, v10  ; key = 4c + r")
E("  v_and_b32 v11, 7, v10")
E("  v_lshlrev_b32 v11, 5, v11       ; (key&7)*32")
E("  v_lshl_add_u32 v11, v10, 8, v11 ; + key*256")
E("  v_and_b32 v12, 3, v0            ; cc")
E("  v_lshl_add_u32 v11, v12, 3, v11")
E("  v_add_u32 v11, s57, v11")
E("  s_waitcnt lgkmcnt(0)")
E(f"  s_add_u32 s{S_TAG}, s{S_TAG}, 1")
E("  s_barrier                        ; Bar1")
E("  s_barrier")
QF = 48
for ks in range(4):
    E(f"  ds_read_b128 v[{QF+4*ks}:{QF+4*ks+3}], v9 offset:{ks*64}")
E("  s_waitcnt vmcnt(8) lgkmcnt(0)")
SC = 64
for tt in range(2):
    for ks in range(4):
        r = KR + (tt * 4 + ks) * 4
        c = "0" if ks == 0 else f"v[{SC+4*tt}:{SC+4*tt+3}]"
        E(f"  v_mfma_f32_16x16x32_bf16 v[{SC+4*tt}:{SC+4*tt+3}], v[{r}:{r+3}], v[{QF+4*ks}:{QF+4*ks+3}], {c}")
E("  s_nop 7")
E("  s_nop 1")
E("  s_mov_b32 s58, 0x3db504f3       ; 128^-0.5 (f32)")
E("  s_mov_b32 s59, 0x3fb8aa3b       ; log2(e)")
for j in range(4):
    E(f"  v_cvt_pk_bf16_f32 v{72+j}, v{SC+2*j}, v{SC+2*j+1}")
for j in range(4):
    E(f"  v_lshlrev_b32 v{SC+2*j}, 16, v{72+j}")
    E(f"  v_and_b32 v{SC+2*j+1}, 0xffff0000, v{72+j}")
for j in range(8):
    E(f"  v_mul_f32 v{SC+j}, s58, v{SC+j}")
for j in range(4):
    E(f"  v_cvt_pk_bf16_f32 v{72+j}, v{SC+2*j}, v{SC+2*j+1}")
for j in range(4):
    E(f"  v_lshlrev_b32 v{SC+2*j}, 16, v{72+j}")
    E(f"  v_and_b32 v{SC+2*j+1}, 0xffff0000, v{72+j}")
for j in range(8):
    E(f"  v_mul_f32 v{SC+j}, s59, v{SC+j}")
E(f"  v_max3_f32 v76, v{SC}, v{SC+1}, v{SC+2}")
E(f"  v_max3_f32 v77, v{SC+3}, v{SC+4}, v{SC+5}")
E(f"  v_max3_f32 v76, v76, v{SC+6}, v{SC+7}")
E("  v_max_f32 v76, v76, v77")
E("  v_mov_b32 v77, v76")
E("  s_nop 1")
E("  v_permlane16_swap_b32 v76, v77")
E("  s_nop 1")
E("  v_max_f32 v76, v76, v77")
E("  v_mov_b32 v77, v76")
E("  s_nop 1")
E("  v_permlane32_swap_b32 v76, v77")
E("  s_nop 1")
E("  v_max_f32 v76, v76, v77         ; m_w")
for j in range(8):
    E(f"  v_sub_f32 v{SC+j}, v{SC+j}, v76")
for j in range(8):
    E(f"  v_exp_f32 v{SC+j}, v{SC+j}")
E("  s_nop 0")
for j in range(4):
    E(f"  v_cvt_pk_bf16_f32 v{72+j}, v{SC+2*j}, v{SC+2*j+1}   ; P frag")
E(f"  v_add_f32 v77, v{SC}, v{SC+1}")
E(f"  v_add_f32 v78, v{SC+2}, v{SC+3}")
E(f"  v_add_f32 v79, v{SC+4}, v{SC+5}")
E(f"  v_add_f32 v80, v{SC+6}, v{SC+7}")
E("  v_add_f32 v77, v77, v78")
E("  v_add_f32 v79, v79, v80")
E("  v_add_f32 v77, v77, v79")
E("  v_mov_b32 v78, v77")
E("  s_nop 1")
E("  v_permlane16_swap_b32 v77, v78")
E("  s_nop 1")
E("  v_add_f32 v77, v77, v78")
E("  v_mov_b32 v78, v77")
E("  s_nop 1")
E("  v_permlane32_swap_b32 v77, v78")
E("  s_nop 1")
E("  v_add_f32 v77, v77, v78         ; l_w   (v76=m_w, v77=l_w)")
E("  s_waitcnt vmcnt(0)")
VF = 16
for t in range(8):
    E(f"  v_xor_b32 v12, {t*32}, v11")
    E(f"  ds_read_b64_tr_b16 v[{VF+4*t}:{VF+4*t+1}], v12")
    E(f"  ds_read_b64_tr_b16 v[{VF+4*t+2}:{VF+4*t+3}], v12 offset:4096")
OA = 84
for t in range(8):
    E(f"  s_waitcnt lgkmcnt({14-2*t})")
    E(f"  v_mfma_f32_16x16x32_bf16 v[{OA+4*t}:{OA+4*t+3}], v[{VF+4*t}:{VF+4*t+3}], v[72:75], 0")
E("  v_and_b32 v12, 3, v0")
E("  v_lshlrev_b32 v12, 9, v12")
E("  v_lshl_add_u32 v12, v3, 4, v12")
E(f"  s_lshl_b32 s55, s{S_WAVE}, 11")
E(f"  s_add_u32 s55, s55, {LDS_OPART}")
E("  v_add_u32 v12, s55, v12")
E("  v_and_b32 v13, 3, v0")
E("  v_lshlrev_b32 v13, 3, v13")
E(f"  s_lshl_b32 s55, s{S_WAVE}, 5")
E(f"  s_add_u32 s55, s55, {LDS_MLP}")
E("  v_add_u32 v13, s55, v13")
E("  v_cmp_gt_u32 vcc, 4, v2")
E("  s_and_saveexec_b64 s[60:61], vcc")
E("  ds_write_b64 v13, v[76:77]")
E("  s_nop 4")
for t in range(8):
    E(f"  ds_write_b128 v12, v[{OA+4*t}:{OA+4*t+3}] offset:{64*t}")
E("  s_mov_b64 exec, s[60:61]")
E("  s_waitcnt lgkmcnt(0)")
E("  s_barrier                        ; Bar3")
E(f"  s_lshl_b32 s55, s{S_WAVE}, 9")
E(f"  s_add_u32 s55, s55, {LDS_OPART}")
E("  v_lshlrev_b32 v12, 3, v0")
E("  v_add_u32 v12, s55, v12")
E(f"  s_lshl_b32 s55, s{S_WAVE}, 3")
E(f"  s_add_u32 s55, s55, {LDS_MLP}")
E("  v_mov_b32 v13, s55")
for wv in range(4):
    E(f"  ds_read_b64 v[{16+2*wv}:{17+2*wv}], v13 offset:{wv*32}")
for wv in range(4):
    E(f"  ds_read_b64 v[{24+2*wv}:{25+2*wv}], v12 offset:{wv*2048}")
E("  s_lshl_b32 s55, s52, 2")
E(f"  s_add_u32 s55, s55, s{S_WAVE}")
E("  s_lshl_b32 s55, s55, 5")
E("  s_add_u32 s55, s55, s53         ; (g*4+b)*32 + s")
E("  s_lshl_b32 s59, s55, 10")
E(f"  s_add_u32 s59, s59, {WS_AP}")
E("  v_lshlrev_b32 v14, 4, v0")
E("  v_add_u32 v14, s59, v14")
E("  s_lshl_b32 s59, s55, 4")
E(f"  s_add_u32 s59, s59, {WS_ML}")
E("  v_mov_b32 v15, s59")
E("  s_waitcnt lgkmcnt(4)")
E("  v_max3_f32 v32, v16, v18, v20")
E("  v_max_f32 v32, v32, v22         ; M")
for wv in range(4):
    E(f"  v_sub_f32 v{33+wv}, v{16+2*wv}, v32")
for wv in range(4):
    E(f"  v_exp_f32 v{33+wv}, v{33+wv}")
E("  s_nop 0")
E("  v_mul_f32 v34, v34, v34")
L.pop()
E("  v_mul_f32 v38, v33, v17")
for wv in range(1, 4):
    E(f"  v_fmac_f32 v38, v{33+wv}, v{17+2*wv}   ; L")
E("  s_waitcnt lgkmcnt(0)")
E("  v_mul_f32 v40, v33, v24")
E("  v_mul_f32 v42, v33, v25")
for wv in range(1, 4):
    E(f"  v_fmac_f32 v40, v{33+wv}, v{24+2*wv}")
    E(f"  v_fmac_f32 v42, v{33+wv}, v{25+2*wv}")
E(f"  v_mov_b32 v41, s{S_TAG}")
E(f"  v_mov_b32 v43, s{S_TAG}")
E(f"  buffer_store_dwordx4 v[40:43], v14, s[{SWS}:{SWS+3}], 0 offen sc1")
E("  v_mov_b32 v44, v32")
E(f"  v_mov_b32 v45, s{S_TAG}")
E("  v_mov_b32 v46, v38")
E(f"  v_mov_b32 v47, s{S_TAG}")
E("  v_cmp_gt_u32 vcc, 1, v0")
E("  s_and_saveexec_b64 s[60:61], vcc")
E(f"  buffer_store_dwordx4 v[44:47], v15, s[{SWS}:{SWS+3}], 0 offen sc1")
E("  s_mov_b64 exec, s[60:61]")
E("L_end:")
E("  s_endpgm")
E('.section .rodata,"a"')
E(".p2align 6")
E(".amdhsa_kernel standalone__sliding_block_cached__decode_kernel")
E("  .amdhsa_next_free_vgpr 128")
E("  .amdhsa_next_free_sgpr 80")
E("  .amdhsa_accum_offset 128")
E("  .amdhsa_group_segment_fixed_size 0")
E("  .amdhsa_kernarg_size 64")
E("  .amdhsa_user_sgpr_count 2")
E("  .amdhsa_user_sgpr_kernarg_segment_ptr 1")
E("  .amdhsa_system_sgpr_workgroup_id_x 1")
E(".end_amdhsa_kernel")

open(OUT, "w").write("\n".join(L) + "\n")
print("wrote", OUT, len(L), "lines")
```

```python
import sys, os

OUT = sys.argv[1] if len(sys.argv) > 1 else "standalone__sliding_block_cached__decode.s"
L = []
def E(s=""):
    L.append(s)
STAMPS = int(os.environ.get("STAMPS", "0"))
KPRE = int(os.environ.get("KPRE", "4"))
KVF = os.environ.get("KVF", "")
QSLEEP = int(os.environ.get("QSLEEP", "12"))
MLREP = int(os.environ.get("MLREP", "0"))
ROT3 = int(os.environ.get("ROT3", "0"))
def STAMP(i):
    if STAMPS:
        E("  s_memrealtime s[78:79]")
        E("  s_waitcnt lgkmcnt(0)")
        E(f"  s_mov_b32 s{80+i}, s78")

WS_NONCE = 0
WS_QP = 0x10000
WS_ML = 0x30000 if not MLREP else 0x240000
WS_AP = 0x40000
WS_OP = 0x140000
WS_SIZE = 0x260000 if not STAMPS else 0x400000
WS_STAMP = 0x300000

LDS_V = 0
LDS_Q = 32768
LDS_OPART = 33792
LDS_MLP = 41984
LDS_P1 = 42240
LDS_O3 = 42496
LDS_SIZE = 43008

POLL_MAX = 200000

hdr = open("standalone__sliding_block_cached__decode.s.ref").read().split("\n")
for ln in hdr:
    if ln.startswith("; @launch"):
        break
    E(ln)
E(f"; @launch grid=(256,1,1) block=(512,1,1) lds={LDS_SIZE}")
E('.amdgcn_target "amdgcn-amd-amdhsa--gfx950"')
E(".text")
E(".globl standalone__sliding_block_cached__decode_kernel")
E(".p2align 8")
E(".type standalone__sliding_block_cached__decode_kernel,@function")
E("standalone__sliding_block_cached__decode_kernel:")

SX, SK, SV, SWQ, SWO, SOUT, SWS = 4, 8, 12, 16, 20, 24, 28
S_TAG, S_WAVE = 32, 33
S_G, S_IDX = 52, 53
def srd(base, ptr_lo, nbytes):
    E(f"  s_mov_b32 s{base}, s{ptr_lo}")
    E(f"  s_and_b32 s{base+1}, s{ptr_lo+1}, 0xffff")
    E(f"  s_mov_b32 s{base+2}, {nbytes}")
    E(f"  s_mov_b32 s{base+3}, 0x00020000")

E("  s_cmp_ge_u32 s2, 256")
E("  s_cbranch_scc1 L_end2")
E("  s_load_dwordx16 s[36:51], s[0:1], 0")
E("  v_lshrrev_b32 v1, 6, v0")
E("  v_and_b32 v0, 63, v0            ; lane")
E(f"  s_and_b32 s{S_G}, s2, 7")
E(f"  s_lshr_b32 s{S_IDX}, s2, 3")
E(f"  v_readfirstlane_b32 s{S_WAVE}, v1")
if STAMPS:
    for i in range(16):
        E(f"  s_mov_b32 s{80+i}, 0")
    E(f"  s_mov_b32 s34, s{S_WAVE}")
STAMP(0)
E("  s_waitcnt lgkmcnt(0)")
E(f"  s_load_dword s{S_TAG}, s[50:51], {WS_NONCE}")
srd(SX, 36, 1024)
srd(SK, 38, 67108864)
srd(SV, 40, 67108864)
srd(SWQ, 42, 4194304)
srd(SWO, 44, 4194304)
srd(SOUT, 46, 1024)
srd(SWS, 50, WS_SIZE)
E(f"  s_cmp_ge_u32 s{S_WAVE}, 4")
E("  s_cbranch_scc1 L_bwave")

def fma_rows(wbase, xb, acc, tmp):
    for i in range(4):
        for k in range(4):
            w = wbase + 4 * i + k
            E(f"  v_lshlrev_b32 v{tmp}, 16, v{w}")
            E(f"  v_and_b32 v{tmp+1}, 0xffff0000, v{w}")
            if i == 0:
                E(f"  v_mul_f32 v{acc+2*k}, v{xb+i}, v{tmp}")
                E(f"  v_mul_f32 v{acc+2*k+1}, v{xb+i}, v{tmp+1}")
            else:
                E(f"  v_fmac_f32 v{acc+2*k}, v{xb+i}, v{tmp}")
                E(f"  v_fmac_f32 v{acc+2*k+1}, v{xb+i}, v{tmp+1}")

E("L_awave:")
E("  s_setprio 3")
E("  v_lshrrev_b32 v2, 1, v0         ; j")
E("  v_and_b32 v3, 1, v0             ; hf")
E(f"  s_add_u32 s55, s{S_G}, 1")
E("  s_and_b32 s55, s55, 7")
E("  s_lshl_b32 s55, s55, 9")
E(f"  s_lshl_b32 s56, s{S_IDX}, 4")
E("  s_add_u32 s55, s55, s56")
E(f"  s_lshl_b32 s56, s{S_WAVE}, 7")
E("  v_lshlrev_b32 v4, 2, v2")
E("  v_add_u32 v4, s56, v4           ; row0")
E("  v_lshlrev_b32 v5, 1, v4")
E(f"  buffer_load_dwordx2 v[6:7], v5, s[{SX}:{SX+3}], 0 offen")
E("  v_lshlrev_b32 v5, 13, v4")
E("  v_lshl_add_u32 v5, v3, 4, v5")
E("  s_lshl_b32 s57, s55, 1")
E("  v_add_u32 v5, s57, v5")
E("  s_movk_i32 s56, 0x2000")
E("  s_movk_i32 s57, 0x4000")
E("  s_movk_i32 s58, 0x6000")
WQ = 16
E(f"  buffer_load_dwordx4 v[{WQ}:{WQ+3}], v5, s[{SWQ}:{SWQ+3}], 0 offen")
E(f"  buffer_load_dwordx4 v[{WQ+4}:{WQ+7}], v5, s[{SWQ}:{SWQ+3}], s56 offen")
E(f"  buffer_load_dwordx4 v[{WQ+8}:{WQ+11}], v5, s[{SWQ}:{SWQ+3}], s57 offen")
E(f"  buffer_load_dwordx4 v[{WQ+12}:{WQ+15}], v5, s[{SWQ}:{SWQ+3}], s58 offen")
E("  v_lshrrev_b32 v8, 4, v0         ; R")
E("  v_lshl_add_u32 v9, v3, 3, v8    ; 8hf + R")
E("  v_lshlrev_b32 v9, 2, v9")
E(f"  s_lshl_b32 s56, s{S_WAVE}, 6")
E(f"  s_add_u32 s56, s56, {LDS_P1}")
E("  v_add_u32 v9, s56, v9")
E("  v_and_b32 v14, 7, v0")
E("  v_lshlrev_b32 v14, 3, v14")
E("  s_lshl_b32 s56, s55, 2")
E(f"  s_add_u32 s56, s56, {WS_QP}")
E("  v_add_u32 v15, s56, v14")
E("  v_and_b32 v12, 14, v0")
E("  v_cmp_eq_u32 s[60:61], 0, v12")
E("  v_cmp_gt_u32 s[74:75], 8, v0")
E(f"  s_lshr_b32 s55, s{S_G}, 1")
E("  s_add_u32 s55, s55, 1")
E("  s_and_b32 s55, s55, 3")
E("  s_lshl_b32 s55, s55, 3")
E(f"  s_lshr_b32 s54, s{S_IDX}, 2")
E("  s_add_u32 s54, s54, s55         ; h3")
E(f"  s_and_b32 s63, s{S_IDX}, 3       ; quarter")
E(f"  s_and_b32 s64, s{S_G}, 1")
E("  s_xor_b32 s64, s64, 1")
E(f"  s_lshl_b32 s65, s{S_WAVE}, 1")
E("  s_add_u32 s64, s64, s65")
E(f"  s_lshl_b32 s55, s{S_G}, 11")
E(f"  s_add_u32 s55, s55, {WS_QP}")
E("  v_lshlrev_b32 v60, 4, v0")
E("  v_add_u32 v60, s55, v60")
E("  v_lshlrev_b32 v61, 3, v0")
E(f"  v_add_u32 v61, {LDS_Q}, v61")
E("  s_waitcnt vmcnt(0) lgkmcnt(0)")
E(f"  s_add_u32 s{S_TAG}, s{S_TAG}, 1")
STAMP(1)
XB = 10
E(f"  v_lshlrev_b32 v{XB}, 16, v6")
E(f"  v_and_b32 v{XB+1}, 0xffff0000, v6")
E(f"  v_lshlrev_b32 v{XB+2}, 16, v7")
E(f"  v_and_b32 v{XB+3}, 0xffff0000, v7")
ACC = 32
fma_rows(WQ, XB, ACC, 58)
E("  s_nop 1")
for k in range(8):
    E(f"  v_add_f32_dpp v{ACC+k}, v{ACC+k}, v{ACC+k} quad_perm:[2,3,0,1] row_mask:0xf bank_mask:0xf")
for k in range(8):
    E(f"  v_add_f32_dpp v{ACC+k}, v{ACC+k}, v{ACC+k} row_ror:4 row_mask:0xf bank_mask:0xf")
for k in range(8):
    E(f"  v_add_f32_dpp v{ACC+k}, v{ACC+k}, v{ACC+k} row_ror:8 row_mask:0xf bank_mask:0xf")
E("  s_nop 1")
for k in range(4):
    E(f"  v_permlane16_swap_b32 v{ACC+2*k}, v{ACC+2*k+1}")
E("  s_nop 1")
for k in range(4):
    E(f"  v_add_f32 v{ACC+2*k}, v{ACC+2*k}, v{ACC+2*k+1}")
E("  s_nop 1")
E(f"  v_permlane32_swap_b32 v{ACC}, v{ACC+2}")
E(f"  v_permlane32_swap_b32 v{ACC+4}, v{ACC+6}")
E("  s_nop 1")
E(f"  v_add_f32 v{ACC}, v{ACC}, v{ACC+2}")
E(f"  v_add_f32 v{ACC+4}, v{ACC+4}, v{ACC+6}")
E("  s_mov_b64 exec, s[60:61]")
E(f"  ds_write2_b32 v9, v{ACC}, v{ACC+4} offset0:0 offset1:4")
E("  s_mov_b64 exec, -1")
E("  v_and_b32 v3, 7, v0             ; c")
E("  v_lshrrev_b32 v2, 3, v0         ; rgrp")
E("  s_lshl_b32 s55, s54, 7")
E("  s_lshl_b32 s56, s63, 5")
E("  s_add_u32 s55, s55, s56")
E("  v_lshlrev_b32 v4, 2, v2")
E("  v_add_u32 v4, s55, v4           ; row0")
E("  v_lshlrev_b32 v5, 10, v4")
E("  v_lshl_add_u32 v5, v3, 4, v5")
E("  s_lshl_b32 s56, s64, 7")
E("  v_add_u32 v5, s56, v5")
E("  s_waitcnt lgkmcnt(0)")
E("  s_barrier                        ; Bar1")
E(f"  s_cmp_lg_u32 s{S_WAVE}, 0")
E("  s_cbranch_scc1 L_a_nopub")
for wv in range(4):
    E(f"  ds_read_b64 v[{40+2*wv}:{41+2*wv}], v14 offset:{LDS_P1+wv*64}")
E("  s_waitcnt lgkmcnt(0)")
E("  v_add_f32 v40, v40, v42")
E("  v_add_f32 v41, v41, v43")
E("  v_add_f32 v44, v44, v46")
E("  v_add_f32 v45, v45, v47")
E("  v_add_f32 v40, v40, v44")
E("  v_add_f32 v41, v41, v45")
E("  v_cvt_pk_bf16_f32 v40, v40, v41")
E(f"  v_mov_b32 v41, s{S_TAG}")
E("  s_mov_b64 exec, s[74:75]")
E(f"  buffer_store_dwordx2 v[40:41], v15, s[{SWS}:{SWS+3}], 0 offen sc1")
E("  s_mov_b64 exec, -1")
E("L_a_nopub:")
E("  s_barrier")
STAMP(2)
E(f"  s_cmp_lg_u32 s{S_WAVE}, 1")
E("  s_cbranch_scc1 L_a_noq")
def qissue(i):
    b = 64 + 8 * i
    E(f"  buffer_load_dwordx4 v[{b}:{b+3}], v60, s[{SWS}:{SWS+3}], 0 offen sc1")
    E(f"  buffer_load_dwordx4 v[{b+4}:{b+7}], v60, s[{SWS}:{SWS+3}], 0 offen offset:1024 sc1")
for i in range(4):
    E(f"  s_sleep {QSLEEP}")
    qissue(i)
E(f"  s_mov_b32 s62, {POLL_MAX}")
E("L_poll1:")
for i in range(4):
    b = 64 + 8 * i
    E("  s_waitcnt vmcnt(6)")
    E(f"  v_xor_b32 v56, s{S_TAG}, v{b+1}")
    for r in (b + 3, b + 5, b + 7):
        E(f"  v_xor_b32 v57, s{S_TAG}, v{r}")
        E("  v_or_b32 v56, v56, v57")
    E("  v_cmp_ne_u32 vcc, 0, v56")
    E(f"  s_cbranch_vccz L_q_ok{i}")
    qissue(i)
E("  s_sub_u32 s62, s62, 1")
E("  s_cmp_lg_u32 s62, 0")
E("  s_cbranch_scc1 L_poll1")
for i in range(4):
    b = 64 + 8 * i
    E(f"L_q_ok{i}:")
    E(f"  v_mov_b32 v{b+1}, v{b+2}")
    E(f"  v_mov_b32 v{b+5}, v{b+6}")
    E(f"  ds_write_b64 v61, v[{b}:{b+1}]")
    E(f"  ds_write_b64 v61, v[{b+4}:{b+5}] offset:512")
    if i < 3:
        E("  s_branch L_q_done")
E("L_q_done:")
STAMP(7)
E("  s_waitcnt lgkmcnt(0)")
E("L_a_noq:")
if MLREP:
    E("  s_lshl_b32 s55, s54, 3")
    E("  s_add_u32 s55, s55, s63")
    E("  s_lshl_b32 s55, s55, 9")
else:
    E("  s_lshl_b32 s55, s54, 9")
E(f"  s_add_u32 s55, s55, {WS_ML}")
E("  v_and_b32 v9, 31, v0")
E("  v_lshlrev_b32 v9, 4, v9")
E("  v_add_u32 v9, s55, v9")
E("  v_lshrrev_b32 v13, 3, v0")
E(f"  s_lshl_b32 s56, s{S_WAVE}, 7")
E("  s_add_u32 s55, s55, s56")
E("  v_lshlrev_b32 v12, 4, v13")
E("  v_add_u32 v12, s55, v12")
E("  s_lshl_b32 s55, s54, 15")
E(f"  s_lshl_b32 s56, s{S_WAVE}, 13")
E("  s_add_u32 s55, s55, s56")
E("  s_lshl_b32 s56, s63, 8")
E("  s_add_u32 s55, s55, s56")
E(f"  s_add_u32 s55, s55, {WS_AP}")
E("  v_lshlrev_b32 v15, 10, v13")
E("  v_lshl_add_u32 v15, v14, 2, v15  ; + (l&7)*32")
E("  v_add_u32 v15, s55, v15")
E("  v_lshlrev_b32 v13, 2, v8")
E("  v_lshl_add_u32 v13, v14, 1, v13")
E(f"  s_lshl_b32 s56, s{S_WAVE}, 7")
E(f"  s_add_u32 s56, s56, {LDS_O3}")
E("  v_add_u32 v13, s56, v13")
E("  v_and_b32 v4, 8, v0")
E("  v_cmp_eq_u32 s[60:61], 0, v4")
E("  v_lshlrev_b32 v4, 4, v2")
E("  v_lshl_add_u32 v62, v3, 2, v8")
E("  v_lshlrev_b32 v62, 14, v62")
E("  s_lshl_b32 s55, s64, 11")
E(f"  s_lshr_b32 s56, s{S_G}, 1")
E("  s_lshl_b32 s56, s56, 5")
E(f"  s_add_u32 s56, s56, s{S_IDX}")
E("  s_lshl_b32 s56, s56, 4")
E("  s_add_u32 s55, s55, s56")
E(f"  s_add_u32 s55, s55, {WS_OP}")
E("  v_add_u32 v62, s55, v62")
E("  s_barrier                        ; BarQ")
WO = 16
E(f"  buffer_load_dwordx4 v[{WO}:{WO+3}], v5, s[{SWO}:{SWO+3}], 0 offen")
E(f"  buffer_load_dwordx4 v[{WO+4}:{WO+7}], v5, s[{SWO}:{SWO+3}], 0 offen offset:1024")
E(f"  buffer_load_dwordx4 v[{WO+8}:{WO+11}], v5, s[{SWO}:{SWO+3}], 0 offen offset:2048")
E(f"  buffer_load_dwordx4 v[{WO+12}:{WO+15}], v5, s[{SWO}:{SWO+3}], 0 offen offset:3072")
E("  s_barrier                        ; BarC")
STAMP(3)
E(f"  s_mov_b32 s62, {POLL_MAX}")
E("L_poll2:")
E(f"  buffer_load_dwordx4 v[40:43], v9, s[{SWS}:{SWS+3}], 0 offen sc1")
E(f"  buffer_load_dwordx4 v[44:47], v12, s[{SWS}:{SWS+3}], 0 offen sc1")
E(f"  buffer_load_dwordx4 v[48:51], v15, s[{SWS}:{SWS+3}], 0 offen sc1")
E(f"  buffer_load_dwordx4 v[96:99], v15, s[{SWS}:{SWS+3}], 0 offen offset:16 sc1")
E("  s_waitcnt vmcnt(0)")
if STAMPS:
    E(f"  s_cmp_lg_u32 s62, {POLL_MAX}")
    E("  s_cbranch_scc1 L_d1")
    STAMP(8)
    E("L_d1:")
E(f"  v_xor_b32 v56, s{S_TAG}, v41")
for r in (43, 45, 47, 49, 51, 97, 99):
    E(f"  v_xor_b32 v57, s{S_TAG}, v{r}")
    E("  v_or_b32 v56, v56, v57")
E("  v_cmp_ne_u32 vcc, 0, v56")
E("  s_cbranch_vccz L_poll2_done")
E("  s_sub_u32 s62, s62, 1")
E("  s_cmp_lg_u32 s62, 0")
E("  s_cbranch_scc1 L_poll2")
E("L_poll2_done:")
if STAMPS:
    E(f"  s_sub_u32 s89, {POLL_MAX}, s62")
STAMP(4)
E("  v_mov_b32 v52, v40")
E("  s_nop 1")
E("  v_max_f32_dpp v52, v52, v52 quad_perm:[1,0,3,2] row_mask:0xf bank_mask:0xf")
E("  s_nop 1")
E("  v_max_f32_dpp v52, v52, v52 quad_perm:[2,3,0,1] row_mask:0xf bank_mask:0xf")
E("  s_nop 1")
E("  v_max_f32_dpp v52, v52, v52 row_half_mirror row_mask:0xf bank_mask:0xf")
E("  s_nop 1")
E("  v_max_f32_dpp v52, v52, v52 row_mirror row_mask:0xf bank_mask:0xf")
E("  v_mov_b32 v53, v52")
E("  s_nop 1")
E("  v_permlane16_swap_b32 v52, v53")
E("  s_nop 1")
E("  v_max_f32 v52, v52, v53         ; M")
E("  v_sub_f32 v54, v40, v52")
E("  v_sub_f32 v55, v44, v52")
E("  v_exp_f32 v54, v54")
E("  v_exp_f32 v55, v55")
E("  s_nop 0")
E("  v_mul_f32 v54, v54, v42")
E("  v_mul_f32 v48, v55, v48")
E("  v_mul_f32 v50, v55, v50")
E("  v_mul_f32 v96, v55, v96")
E("  v_mul_f32 v98, v55, v98")
E("  v_add_f32_dpp v54, v54, v54 quad_perm:[1,0,3,2] row_mask:0xf bank_mask:0xf")
E("  v_add_f32_dpp v48, v48, v48 row_ror:8 row_mask:0xf bank_mask:0xf")
E("  v_add_f32_dpp v50, v50, v50 row_ror:8 row_mask:0xf bank_mask:0xf")
E("  v_add_f32_dpp v54, v54, v54 quad_perm:[2,3,0,1] row_mask:0xf bank_mask:0xf")
E("  v_add_f32_dpp v96, v96, v96 row_ror:8 row_mask:0xf bank_mask:0xf")
E("  v_add_f32_dpp v98, v98, v98 row_ror:8 row_mask:0xf bank_mask:0xf")
E("  v_add_f32_dpp v54, v54, v54 row_half_mirror row_mask:0xf bank_mask:0xf")
E("  v_permlane16_swap_b32 v48, v50")
E("  s_nop 0")
E("  v_permlane16_swap_b32 v96, v98")
E("  v_add_f32_dpp v54, v54, v54 row_mirror row_mask:0xf bank_mask:0xf")
E("  v_add_f32 v48, v48, v50")
E("  v_mov_b32 v53, v54")
E("  v_add_f32 v96, v96, v98")
E("  s_nop 1")
E("  v_permlane16_swap_b32 v54, v53")
E("  v_permlane32_swap_b32 v48, v96")
E("  s_nop 1")
E("  v_add_f32 v54, v54, v53         ; L")
E("  v_add_f32 v48, v48, v96")
E("  v_rcp_f32 v54, v54")
E("  s_nop 0")
E("  v_mul_f32 v48, v48, v54")
E("  s_mov_b64 exec, s[60:61]")
E("  ds_write_b32 v13, v48")
E("  s_mov_b64 exec, -1")
E("  s_waitcnt lgkmcnt(0)")
E("  s_barrier                        ; BarO")
for wv in range(4):
    E(f"  ds_read_b128 v[{40+4*wv}:{43+4*wv}], v4 offset:{LDS_O3+wv*128}")
E("  s_waitcnt lgkmcnt(0)")
for j in range(4):
    E(f"  v_add_f32 v{40+j}, v{40+j}, v{44+j}")
    E(f"  v_add_f32 v{48+j}, v{48+j}, v{52+j}")
for j in range(4):
    E(f"  v_add_f32 v{40+j}, v{40+j}, v{48+j}")
E("  v_cvt_pk_bf16_f32 v44, v40, v41")
E("  v_cvt_pk_bf16_f32 v45, v42, v43")
E(f"  v_lshlrev_b32 v{XB}, 16, v44")
E(f"  v_and_b32 v{XB+1}, 0xffff0000, v44")
E(f"  v_lshlrev_b32 v{XB+2}, 16, v45")
E(f"  v_and_b32 v{XB+3}, 0xffff0000, v45")
fma_rows(WO, XB, ACC, 58)
E("  s_nop 1")
for k in range(8):
    E(f"  v_add_f32_dpp v{ACC+k}, v{ACC+k}, v{ACC+k} row_ror:8 row_mask:0xf bank_mask:0xf")
E("  s_nop 1")
for a_, b_ in ((0, 2), (1, 3), (4, 6), (5, 7)):
    E(f"  v_permlane16_swap_b32 v{ACC+a_}, v{ACC+b_}")
E("  s_nop 1")
for a_, b_ in ((0, 2), (1, 3), (4, 6), (5, 7)):
    E(f"  v_add_f32 v{ACC+a_}, v{ACC+a_}, v{ACC+b_}")
E("  s_nop 1")
E(f"  v_permlane32_swap_b32 v{ACC}, v{ACC+4}")
E(f"  v_permlane32_swap_b32 v{ACC+1}, v{ACC+5}")
E("  s_nop 1")
E(f"  v_add_f32 v{ACC}, v{ACC}, v{ACC+4}")
E(f"  v_add_f32 v{ACC+2}, v{ACC+1}, v{ACC+5}")
E(f"  v_mov_b32 v{ACC+1}, s{S_TAG}")
E(f"  v_mov_b32 v{ACC+3}, s{S_TAG}")
E("  s_mov_b64 exec, s[60:61]")
E(f"  buffer_store_dwordx4 v[{ACC}:{ACC+3}], v62, s[{SWS}:{SWS+3}], 0 offen sc1")
E("  s_mov_b64 exec, -1")
STAMP(5)
E(f"  s_cmp_lg_u32 s{S_WAVE}, 0")
E("  s_cbranch_scc1 L_end")
E("  s_lshl_b32 s55, s2, 11")
E(f"  s_add_u32 s55, s55, {WS_OP}")
E("  v_lshlrev_b32 v9, 4, v0")
E("  v_add_u32 v9, s55, v9")
E(f"  s_mov_b32 s62, {POLL_MAX}")
E("L_poll3:")
for k in range(2):
    E(f"  buffer_load_dwordx4 v[{40+4*k}:{43+4*k}], v9, s[{SWS}:{SWS+3}], 0 offen offset:{k*1024} sc1")
E("  s_waitcnt vmcnt(0)")
if STAMPS:
    E(f"  s_cmp_lg_u32 s62, {POLL_MAX}")
    E("  s_cbranch_scc1 L_d2")
    STAMP(10)
    E("L_d2:")
E(f"  v_xor_b32 v56, s{S_TAG}, v41")
for r in (43, 45, 47):
    E(f"  v_xor_b32 v57, s{S_TAG}, v{r}")
    E("  v_or_b32 v56, v56, v57")
E("  v_cmp_ne_u32 vcc, 0, v56")
E("  s_cbranch_vccz L_poll3_done")
E("  s_sub_u32 s62, s62, 1")
E("  s_cmp_lg_u32 s62, 0")
E("  s_cbranch_scc1 L_poll3")
E("L_poll3_done:")
if STAMPS:
    E(f"  s_sub_u32 s91, {POLL_MAX}, s62")
STAMP(6)
E("  v_add_f32 v40, v40, v44")
E("  v_add_f32 v42, v42, v46")
E("  s_nop 1")
E("  v_permlane16_swap_b32 v40, v42")
E("  s_nop 1")
E("  v_add_f32 v40, v40, v42")
E("  v_mov_b32 v42, v40")
E("  s_nop 1")
E("  v_permlane32_swap_b32 v40, v42")
E("  s_nop 1")
E("  v_add_f32 v40, v40, v42")
E("  s_nop 1")
E("  v_add_f32_dpp v40, v40, v40 quad_perm:[1,0,3,2] row_mask:0xf bank_mask:0xf")
E("  s_nop 1")
E("  v_add_f32_dpp v40, v40, v40 quad_perm:[2,3,0,1] row_mask:0xf bank_mask:0xf")
E("  s_nop 1")
E("  v_add_f32_dpp v40, v40, v40 row_half_mirror row_mask:0xf bank_mask:0xf")
E("  s_nop 1")
E("  v_add_f32_dpp v40, v40, v40 row_mirror row_mask:0xf bank_mask:0xf")
E("  s_nop 1")
E("  v_readlane_b32 s55, v40, 16")
E("  v_mov_b32 v42, s55")
E("  v_cvt_pk_bf16_f32 v40, v40, v42")
E(f"  s_lshl_b32 s55, s{S_G}, 7")
E(f"  s_lshl_b32 s56, s{S_IDX}, 2")
E("  s_add_u32 s55, s55, s56")
E("  v_mov_b32 v9, s55")
E("  v_cmp_gt_u32 vcc, 1, v0")
E("  s_and_saveexec_b64 s[60:61], vcc")
E(f"  buffer_store_dword v40, v9, s[{SOUT}:{SOUT+3}], 0 offen")
E("  s_cmp_lg_u32 s2, 0")
E("  s_cbranch_scc1 L_a_nononce")
E(f"  v_mov_b32 v40, s{S_TAG}")
E(f"  v_mov_b32 v9, {WS_NONCE}")
E(f"  buffer_store_dword v40, v9, s[{SWS}:{SWS+3}], 0 offen sc1")
E("L_a_nononce:")
E("  s_mov_b64 exec, s[60:61]")
E("  s_branch L_end")

E("L_bwave:")
E(f"  s_sub_u32 s{S_WAVE}, s{S_WAVE}, 4   ; b")
E(f"  s_lshl_b32 s54, s{S_G}, 15")
E("  s_add_u32 s54, s54, 28672")
E(f"  s_lshl_b32 s55, s{S_IDX}, 7")
E("  s_add_u32 s54, s54, s55")
E(f"  s_lshl_b32 s55, s{S_WAVE}, 5")
E("  s_add_u32 s54, s54, s55")
E("  s_lshl_b32 s54, s54, 8")
E("  v_and_b32 v2, 15, v0")
E("  v_lshrrev_b32 v3, 4, v0")
E("  v_lshlrev_b32 v4, 8, v2")
E("  v_lshl_add_u32 v4, v3, 4, v4")
E("  v_add_u32 v4, s54, v4")
E("  s_movk_i32 s56, 0x1000")
KR = 16
def kload(n):
    tt, ks = n >> 2, n & 3
    so = "0" if tt == 0 else "s56"
    r = KR + (tt * 4 + ks) * 4
    E(f"  buffer_load_dwordx4 v[{r}:{r+3}], v4, s[{SK}:{SK+3}], {so} offen offset:{ks*64} {KVF}")
for n in range(KPRE):
    kload(n)
E("  v_lshlrev_b32 v5, 1, v3")
E("  v_xor_b32 v5, v5, v2")
E("  v_lshlrev_b32 v6, 8, v3")
E("  v_lshl_add_u32 v7, v5, 4, v6")
E("  v_add_u32 v7, s54, v7")
E("  v_xor_b32 v5, 8, v5")
E("  v_lshl_add_u32 v8, v5, 4, v6")
E("  v_add_u32 v8, s54, v8")
E("  v_add_u32 v8, 0x400, v8")
E(f"  s_lshl_b32 s57, s{S_WAVE}, 13")
E("  v_and_b32 v9, 3, v0")
E("  v_lshlrev_b32 v9, 8, v9")
E("  v_lshl_add_u32 v9, v3, 4, v9")
E(f"  v_add_u32 v9, {LDS_Q}, v9")
E("  v_lshrrev_b32 v10, 2, v2")
E("  v_lshl_add_u32 v10, v3, 2, v10")
E("  v_and_b32 v11, 7, v10")
E("  v_lshlrev_b32 v11, 5, v11")
E("  v_lshl_add_u32 v11, v10, 8, v11")
E("  v_and_b32 v12, 3, v0")
E("  v_lshl_add_u32 v11, v12, 3, v11")
E("  v_add_u32 v11, s57, v11")
E("  v_and_b32 v13, 3, v0")
E("  v_lshlrev_b32 v14, 3, v13")
E("  v_lshlrev_b32 v13, 9, v13")
E("  v_lshl_add_u32 v13, v3, 4, v13")
E(f"  s_lshl_b32 s55, s{S_WAVE}, 11")
E(f"  s_add_u32 s55, s55, {LDS_OPART}")
E("  v_add_u32 v13, s55, v13")
E(f"  s_lshl_b32 s55, s{S_WAVE}, 5")
E(f"  s_add_u32 s55, s55, {LDS_MLP}")
E("  v_add_u32 v14, s55, v14")
E(f"  s_lshl_b32 s55, s{S_WAVE}, 9")
E(f"  s_add_u32 s55, s55, {LDS_OPART}")
E("  v_lshlrev_b32 v15, 3, v0")
E("  v_add_u32 v15, s55, v15")
E(f"  s_lshl_b32 s55, s{S_G}, 2")
E(f"  s_add_u32 s55, s55, s{S_WAVE}")
E("  s_lshl_b32 s55, s55, 5")
E(f"  s_add_u32 s55, s55, s{S_IDX}     ; (g*4+b)*32 + split")
E("  s_lshl_b32 s59, s55, 10")
E(f"  s_add_u32 s59, s59, {WS_AP}")
E("  v_lshlrev_b32 v116, 4, v0")
E("  v_add_u32 v116, s59, v116")
if MLREP:
    E(f"  s_lshl_b32 s59, s{S_G}, 2")
    E(f"  s_add_u32 s59, s59, s{S_WAVE}")
    E("  s_lshl_b32 s59, s59, 12")
    E(f"  s_lshl_b32 s62, s{S_IDX}, 4")
    E("  s_add_u32 s59, s59, s62")
    E(f"  s_add_u32 s59, s59, {WS_ML}")
    E("  v_lshlrev_b32 v117, 9, v0")
    E("  v_add_u32 v117, s59, v117")
else:
    E("  s_lshl_b32 s59, s55, 4")
    E(f"  s_add_u32 s59, s59, {WS_ML}")
    E("  v_mov_b32 v117, s59")
E(f"  s_lshl_b32 s55, s{S_WAVE}, 3")
E(f"  s_add_u32 s55, s55, {LDS_MLP}")
E("  v_mov_b32 v118, s55")
E("  v_cmp_gt_u32 s[60:61], 4, v2")
E("  s_barrier                        ; Bar1")
E("  s_barrier                        ; Bar2")
STAMP(7)
for n in range(KPRE, 8):
    kload(n)
for i in range(8):
    E(f"  s_add_u32 m0, s57, {i*1024}")
    E(f"  s_movk_i32 s58, {(i>>1)*2048}")
    E(f"  buffer_load_dwordx4 v{7 + (i&1)}, s[{SV}:{SV+3}], s58 offen lds {KVF}")
STAMP(8)
E("  s_mov_b32 s58, 0x3db504f3       ; 128^-0.5 (f32)")
E("  s_mov_b32 s59, 0x3fb8aa3b       ; log2(e)")
E("  s_waitcnt vmcnt(8) lgkmcnt(0)")
E(f"  s_add_u32 s{S_TAG}, s{S_TAG}, 1")
STAMP(1)
E("  s_barrier                        ; BarQ")
STAMP(2)
QF = 48
for ks in range(4):
    E(f"  ds_read_b128 v[{QF+4*ks}:{QF+4*ks+3}], v9 offset:{ks*64}")
SC = 64
for ks in range(4):
    E(f"  s_waitcnt lgkmcnt({3-ks})")
    for tt in range(2):
        r = KR + (tt * 4 + ks) * 4
        c = "0" if ks == 0 else f"v[{SC+4*tt}:{SC+4*tt+3}]"
        E(f"  v_mfma_f32_16x16x32_bf16 v[{SC+4*tt}:{SC+4*tt+3}], v[{r}:{r+3}], v[{QF+4*ks}:{QF+4*ks+3}], {c}")
E("  s_nop 7")
E("  s_nop 3")
for j in range(4):
    E(f"  v_cvt_pk_bf16_f32 v{72+j}, v{SC+2*j}, v{SC+2*j+1}")
for j in range(4):
    E(f"  v_lshlrev_b32 v{SC+2*j}, 16, v{72+j}")
    E(f"  v_and_b32 v{SC+2*j+1}, 0xffff0000, v{72+j}")
for j in range(8):
    E(f"  v_mul_f32 v{SC+j}, s58, v{SC+j}")
for j in range(4):
    E(f"  v_cvt_pk_bf16_f32 v{72+j}, v{SC+2*j}, v{SC+2*j+1}")
for j in range(4):
    E(f"  v_lshlrev_b32 v{SC+2*j}, 16, v{72+j}")
    E(f"  v_and_b32 v{SC+2*j+1}, 0xffff0000, v{72+j}")
for j in range(8):
    E(f"  v_mul_f32 v{SC+j}, s59, v{SC+j}")
E(f"  v_max3_f32 v76, v{SC}, v{SC+1}, v{SC+2}")
E(f"  v_max3_f32 v77, v{SC+3}, v{SC+4}, v{SC+5}")
E(f"  v_max3_f32 v76, v76, v{SC+6}, v{SC+7}")
E("  v_max_f32 v76, v76, v77")
E("  v_mov_b32 v77, v76")
E("  s_nop 1")
E("  v_permlane16_swap_b32 v76, v77")
E("  s_nop 1")
E("  v_max_f32 v76, v76, v77")
E("  v_mov_b32 v77, v76")
E("  s_nop 1")
E("  v_permlane32_swap_b32 v76, v77")
E("  s_nop 1")
E("  v_max_f32 v76, v76, v77         ; m_w")
for j in range(8):
    E(f"  v_sub_f32 v{SC+j}, v{SC+j}, v76")
for j in range(8):
    E(f"  v_exp_f32 v{SC+j}, v{SC+j}")
E("  s_nop 0")
for j in range(4):
    E(f"  v_cvt_pk_bf16_f32 v{72+j}, v{SC+2*j}, v{SC+2*j+1}")
E(f"  v_add_f32 v77, v{SC}, v{SC+1}")
E(f"  v_add_f32 v78, v{SC+2}, v{SC+3}")
E(f"  v_add_f32 v79, v{SC+4}, v{SC+5}")
E(f"  v_add_f32 v80, v{SC+6}, v{SC+7}")
E("  v_add_f32 v77, v77, v78")
E("  v_add_f32 v79, v79, v80")
E("  v_add_f32 v77, v77, v79")
E("  v_mov_b32 v78, v77")
E("  s_nop 1")
E("  v_permlane16_swap_b32 v77, v78")
E("  s_nop 1")
E("  v_add_f32 v77, v77, v78")
E("  v_mov_b32 v78, v77")
E("  s_nop 1")
E("  v_permlane32_swap_b32 v77, v78")
E("  s_nop 1")
E("  v_add_f32 v77, v77, v78         ; l_w")
STAMP(3)
E("  s_waitcnt vmcnt(0)")
STAMP(4)
VF = 84
for t in range(8):
    E(f"  v_xor_b32 v12, {t*32}, v11")
    E(f"  ds_read_b64_tr_b16 v[{VF+4*t}:{VF+4*t+1}], v12")
    E(f"  ds_read_b64_tr_b16 v[{VF+4*t+2}:{VF+4*t+3}], v12 offset:4096")
OA = 16
for t in range(8):
    E(f"  s_waitcnt lgkmcnt({14-2*t})")
    E(f"  v_mfma_f32_16x16x32_bf16 v[{OA+4*t}:{OA+4*t+3}], v[{VF+4*t}:{VF+4*t+3}], v[72:75], 0")
E("  s_mov_b64 exec, s[60:61]")
E("  ds_write_b64 v14, v[76:77]")
E("  s_nop 4")
for t in range(8):
    E(f"  ds_write_b128 v13, v[{OA+4*t}:{OA+4*t+3}] offset:{64*t}")
E("  s_mov_b64 exec, -1")
E("  s_waitcnt lgkmcnt(0)")
E("  s_barrier                        ; BarC")
STAMP(5)
for wv in range(4):
    E(f"  ds_read_b64 v[{48+2*wv}:{49+2*wv}], v118 offset:{wv*32}")
for wv in range(4):
    E(f"  ds_read_b64 v[{56+2*wv}:{57+2*wv}], v15 offset:{wv*2048}")
E("  s_waitcnt lgkmcnt(4)")
E("  v_max3_f32 v32, v48, v50, v52")
E("  v_max_f32 v32, v32, v54         ; M")
for wv in range(4):
    E(f"  v_sub_f32 v{33+wv}, v{48+2*wv}, v32")
for wv in range(4):
    E(f"  v_exp_f32 v{33+wv}, v{33+wv}")
E("  s_nop 0")
E("  v_mul_f32 v38, v33, v49")
for wv in range(1, 4):
    E(f"  v_fmac_f32 v38, v{33+wv}, v{49+2*wv}")
E("  s_waitcnt lgkmcnt(0)")
E("  v_mul_f32 v40, v33, v56")
E("  v_mul_f32 v42, v33, v57")
for wv in range(1, 4):
    E(f"  v_fmac_f32 v40, v{33+wv}, v{56+2*wv}")
    E(f"  v_fmac_f32 v42, v{33+wv}, v{57+2*wv}")
E(f"  v_mov_b32 v41, s{S_TAG}")
E(f"  v_mov_b32 v43, s{S_TAG}")
E(f"  buffer_store_dwordx4 v[40:43], v116, s[{SWS}:{SWS+3}], 0 offen sc1")
E("  v_mov_b32 v44, v32")
E(f"  v_mov_b32 v45, s{S_TAG}")
E("  v_mov_b32 v46, v38")
E(f"  v_mov_b32 v47, s{S_TAG}")
E(f"  v_cmp_gt_u32 vcc, {8 if MLREP else 1}, v0")
E("  s_and_saveexec_b64 s[60:61], vcc")
E(f"  buffer_store_dwordx4 v[44:47], v117, s[{SWS}:{SWS+3}], 0 offen sc1")
E("  s_mov_b64 exec, s[60:61]")

E("L_end:")
if STAMPS:
    STAMP(15)
    E("  s_mov_b64 exec, -1")
    E("  v_mov_b32 v40, 0")
    for i in range(16):
        E(f"  v_writelane_b32 v40, s{80+i}, {i}")
    E("  s_lshl_b32 s55, s2, 3")
    E("  s_add_u32 s55, s55, s34")
    E("  s_lshl_b32 s55, s55, 6")
    E(f"  s_add_u32 s55, s55, {WS_STAMP}")
    E("  v_lshlrev_b32 v9, 2, v0")
    E("  v_add_u32 v9, s55, v9")
    E("  v_cmp_gt_u32 vcc, 16, v0")
    E("  s_and_saveexec_b64 s[60:61], vcc")
    E(f"  buffer_store_dword v40, v9, s[{SWS}:{SWS+3}], 0 offen")
    E("  s_mov_b64 exec, s[60:61]")
E("L_end2:")
E("  s_endpgm")
E('.section .rodata,"a"')
E(".p2align 6")
E(".amdhsa_kernel standalone__sliding_block_cached__decode_kernel")
E("  .amdhsa_next_free_vgpr 128")
E("  .amdhsa_next_free_sgpr 100")
E("  .amdhsa_accum_offset 128")
E("  .amdhsa_group_segment_fixed_size 0")
E("  .amdhsa_kernarg_size 64")
E("  .amdhsa_user_sgpr_count 2")
E("  .amdhsa_user_sgpr_kernarg_segment_ptr 1")
E("  .amdhsa_system_sgpr_workgroup_id_x 1")
E(".end_amdhsa_kernel")
open(OUT, "w").write("\n".join(L) + "\n")
print("wrote", OUT, len(L), "lines")
```

```python
import sys, os

OUT = sys.argv[1] if len(sys.argv) > 1 else "standalone__sliding_block_cached__decode.s"
L = []
def E(s=""):
    L.append(s)
STAMPS = int(os.environ.get("STAMPS", "0"))
KPRE = int(os.environ.get("KPRE", "4"))
KVF = os.environ.get("KVF", "nt")
WQF = os.environ.get("WQF", "nt")
WOF = os.environ.get("WOF", "nt")
WOLATE = int(os.environ.get("WOLATE", "0"))
QSLEEP = int(os.environ.get("QSLEEP", "12"))
MLREP = int(os.environ.get("MLREP", "0"))
ROT3 = int(os.environ.get("ROT3", "0"))
def STAMP(i):
    if STAMPS:
        E("  s_memrealtime s[78:79]")
        E("  s_waitcnt lgkmcnt(0)")
        E(f"  s_mov_b32 s{80+i}, s78")

WS_NONCE = 0
WS_QP = 0x10000
WS_ML = 0x30000 if not MLREP else 0x240000
WS_AP = 0x40000
WS_OP = 0x140000
WS_SIZE = 0x260000 if not STAMPS else 0x400000
WS_STAMP = 0x300000

LDS_V = 0
LDS_Q = 32768
LDS_OPART = 33792
LDS_MLP = 41984
LDS_P1 = 42240
LDS_O3 = 42496
LDS_SIZE = 43008

POLL_MAX = 200000

hdr = open("standalone__sliding_block_cached__decode.s.ref").read().split("\n")
for ln in hdr:
    if ln.startswith("; @launch"):
        break
    E(ln)
E(f"; @launch grid=(256,1,1) block=(512,1,1) lds={LDS_SIZE}")
E('.amdgcn_target "amdgcn-amd-amdhsa--gfx950"')
E(".text")
E(".globl standalone__sliding_block_cached__decode_kernel")
E(".p2align 8")
E(".type standalone__sliding_block_cached__decode_kernel,@function")
E("standalone__sliding_block_cached__decode_kernel:")

SX, SK, SV, SWQ, SWO, SOUT, SWS = 4, 8, 12, 16, 20, 24, 28
S_TAG, S_WAVE = 32, 33
S_G, S_IDX = 52, 53
def srd(base, ptr_lo, nbytes):
    E(f"  s_mov_b32 s{base}, s{ptr_lo}")
    E(f"  s_and_b32 s{base+1}, s{ptr_lo+1}, 0xffff")
    E(f"  s_mov_b32 s{base+2}, {nbytes}")
    E(f"  s_mov_b32 s{base+3}, 0x00020000")

E("  s_cmp_ge_u32 s2, 256")
E("  s_cbranch_scc1 L_end2")
E("  s_load_dwordx16 s[36:51], s[0:1], 0")
E("  v_lshrrev_b32 v1, 6, v0")
E("  v_and_b32 v0, 63, v0            ; lane")
E(f"  s_and_b32 s{S_G}, s2, 7")
E(f"  s_lshr_b32 s{S_IDX}, s2, 3")
E(f"  v_readfirstlane_b32 s{S_WAVE}, v1")
if STAMPS:
    for i in range(16):
        E(f"  s_mov_b32 s{80+i}, 0")
    E(f"  s_mov_b32 s34, s{S_WAVE}")
STAMP(0)
E("  s_waitcnt lgkmcnt(0)")
E(f"  s_load_dword s{S_TAG}, s[50:51], {WS_NONCE}")
srd(SX, 36, 1024)
srd(SK, 38, 67108864)
srd(SV, 40, 67108864)
srd(SWQ, 42, 4194304)
srd(SWO, 44, 4194304)
srd(SOUT, 46, 1024)
srd(SWS, 50, WS_SIZE)
E(f"  s_cmp_ge_u32 s{S_WAVE}, 4")
E("  s_cbranch_scc1 L_bwave")

def fma_rows(wbase, xb, acc, tmp):
    for i in range(4):
        for k in range(4):
            w = wbase + 4 * i + k
            E(f"  v_lshlrev_b32 v{tmp}, 16, v{w}")
            E(f"  v_and_b32 v{tmp+1}, 0xffff0000, v{w}")
            if i == 0:
                E(f"  v_mul_f32 v{acc+2*k}, v{xb+i}, v{tmp}")
                E(f"  v_mul_f32 v{acc+2*k+1}, v{xb+i}, v{tmp+1}")
            else:
                E(f"  v_fmac_f32 v{acc+2*k}, v{xb+i}, v{tmp}")
                E(f"  v_fmac_f32 v{acc+2*k+1}, v{xb+i}, v{tmp+1}")

E("L_awave:")
E("  s_setprio 3")
E("  v_lshrrev_b32 v2, 1, v0         ; j")
E("  v_and_b32 v3, 1, v0             ; hf")
E(f"  s_add_u32 s55, s{S_G}, 1")
E("  s_and_b32 s55, s55, 7")
E("  s_lshl_b32 s55, s55, 9")
E(f"  s_lshl_b32 s56, s{S_IDX}, 4")
E("  s_add_u32 s55, s55, s56")
E(f"  s_lshl_b32 s56, s{S_WAVE}, 7")
E("  v_lshlrev_b32 v4, 2, v2")
E("  v_add_u32 v4, s56, v4           ; row0")
E("  v_lshlrev_b32 v5, 1, v4")
E(f"  buffer_load_dwordx2 v[6:7], v5, s[{SX}:{SX+3}], 0 offen")
E("  v_lshlrev_b32 v5, 13, v4")
E("  v_lshl_add_u32 v5, v3, 4, v5")
E("  s_lshl_b32 s57, s55, 1")
E("  v_add_u32 v5, s57, v5")
E("  s_movk_i32 s56, 0x2000")
E("  s_movk_i32 s57, 0x4000")
E("  s_movk_i32 s58, 0x6000")
WQ = 16
E(f"  buffer_load_dwordx4 v[{WQ}:{WQ+3}], v5, s[{SWQ}:{SWQ+3}], 0 offen {WQF}")
E(f"  buffer_load_dwordx4 v[{WQ+4}:{WQ+7}], v5, s[{SWQ}:{SWQ+3}], s56 offen {WQF}")
E(f"  buffer_load_dwordx4 v[{WQ+8}:{WQ+11}], v5, s[{SWQ}:{SWQ+3}], s57 offen {WQF}")
E(f"  buffer_load_dwordx4 v[{WQ+12}:{WQ+15}], v5, s[{SWQ}:{SWQ+3}], s58 offen {WQF}")
E("  v_lshrrev_b32 v8, 4, v0         ; R")
E("  v_lshl_add_u32 v9, v3, 3, v8    ; 8hf + R")
E("  v_lshlrev_b32 v9, 2, v9")
E(f"  s_lshl_b32 s56, s{S_WAVE}, 6")
E(f"  s_add_u32 s56, s56, {LDS_P1}")
E("  v_add_u32 v9, s56, v9")
E("  v_and_b32 v14, 7, v0")
E("  v_lshlrev_b32 v14, 3, v14")
E("  s_lshl_b32 s56, s55, 2")
E(f"  s_add_u32 s56, s56, {WS_QP}")
E("  v_add_u32 v15, s56, v14")
E("  v_and_b32 v12, 14, v0")
E("  v_cmp_eq_u32 s[60:61], 0, v12")
E("  v_cmp_gt_u32 s[74:75], 8, v0")
E(f"  s_lshr_b32 s55, s{S_G}, 1")
E("  s_add_u32 s55, s55, 1")
E("  s_and_b32 s55, s55, 3")
E("  s_lshl_b32 s55, s55, 3")
E(f"  s_lshr_b32 s54, s{S_IDX}, 2")
E("  s_add_u32 s54, s54, s55         ; h3")
E(f"  s_and_b32 s63, s{S_IDX}, 3       ; quarter")
E(f"  s_and_b32 s64, s{S_G}, 1")
E("  s_xor_b32 s64, s64, 1")
E(f"  s_lshl_b32 s65, s{S_WAVE}, 1")
E("  s_add_u32 s64, s64, s65")
E(f"  s_lshl_b32 s55, s{S_G}, 11")
E(f"  s_add_u32 s55, s55, {WS_QP}")
E("  v_lshlrev_b32 v60, 4, v0")
E("  v_add_u32 v60, s55, v60")
E("  v_lshlrev_b32 v61, 3, v0")
E(f"  v_add_u32 v61, {LDS_Q}, v61")
E("  s_waitcnt vmcnt(0) lgkmcnt(0)")
E(f"  s_add_u32 s{S_TAG}, s{S_TAG}, 1")
STAMP(1)
XB = 10
E(f"  v_lshlrev_b32 v{XB}, 16, v6")
E(f"  v_and_b32 v{XB+1}, 0xffff0000, v6")
E(f"  v_lshlrev_b32 v{XB+2}, 16, v7")
E(f"  v_and_b32 v{XB+3}, 0xffff0000, v7")
ACC = 32
fma_rows(WQ, XB, ACC, 58)
E("  s_nop 1")
for k in range(8):
    E(f"  v_add_f32_dpp v{ACC+k}, v{ACC+k}, v{ACC+k} quad_perm:[2,3,0,1] row_mask:0xf bank_mask:0xf")
for k in range(8):
    E(f"  v_add_f32_dpp v{ACC+k}, v{ACC+k}, v{ACC+k} row_ror:4 row_mask:0xf bank_mask:0xf")
for k in range(8):
    E(f"  v_add_f32_dpp v{ACC+k}, v{ACC+k}, v{ACC+k} row_ror:8 row_mask:0xf bank_mask:0xf")
E("  s_nop 1")
for k in range(4):
    E(f"  v_permlane16_swap_b32 v{ACC+2*k}, v{ACC+2*k+1}")
E("  s_nop 1")
for k in range(4):
    E(f"  v_add_f32 v{ACC+2*k}, v{ACC+2*k}, v{ACC+2*k+1}")
E("  s_nop 1")
E(f"  v_permlane32_swap_b32 v{ACC}, v{ACC+2}")
E(f"  v_permlane32_swap_b32 v{ACC+4}, v{ACC+6}")
E("  s_nop 1")
E(f"  v_add_f32 v{ACC}, v{ACC}, v{ACC+2}")
E(f"  v_add_f32 v{ACC+4}, v{ACC+4}, v{ACC+6}")
E("  s_mov_b64 exec, s[60:61]")
E(f"  ds_write2_b32 v9, v{ACC}, v{ACC+4} offset0:0 offset1:4")
E("  s_mov_b64 exec, -1")
E("  v_and_b32 v3, 7, v0             ; c")
E("  v_lshrrev_b32 v2, 3, v0         ; rgrp")
E("  s_lshl_b32 s55, s54, 7")
E("  s_lshl_b32 s56, s63, 5")
E("  s_add_u32 s55, s55, s56")
E("  v_lshlrev_b32 v4, 2, v2")
E("  v_add_u32 v4, s55, v4           ; row0")
E("  v_lshlrev_b32 v5, 10, v4")
E("  v_lshl_add_u32 v5, v3, 4, v5")
E("  s_lshl_b32 s56, s64, 7")
E("  v_add_u32 v5, s56, v5")
E("  s_waitcnt lgkmcnt(0)")
E("  s_barrier                        ; Bar1")
E(f"  s_cmp_lg_u32 s{S_WAVE}, 0")
E("  s_cbranch_scc1 L_a_nopub")
for wv in range(4):
    E(f"  ds_read_b64 v[{40+2*wv}:{41+2*wv}], v14 offset:{LDS_P1+wv*64}")
E("  s_waitcnt lgkmcnt(0)")
E("  v_add_f32 v40, v40, v42")
E("  v_add_f32 v41, v41, v43")
E("  v_add_f32 v44, v44, v46")
E("  v_add_f32 v45, v45, v47")
E("  v_add_f32 v40, v40, v44")
E("  v_add_f32 v41, v41, v45")
E("  v_cvt_pk_bf16_f32 v40, v40, v41")
E(f"  v_mov_b32 v41, s{S_TAG}")
E("  s_mov_b64 exec, s[74:75]")
E(f"  buffer_store_dwordx2 v[40:41], v15, s[{SWS}:{SWS+3}], 0 offen sc1")
E("  s_mov_b64 exec, -1")
E("L_a_nopub:")
E("  s_barrier")
STAMP(2)
E(f"  s_cmp_lg_u32 s{S_WAVE}, 1")
E("  s_cbranch_scc1 L_a_noq")
def qissue(i):
    b = 64 + 8 * i
    E(f"  buffer_load_dwordx4 v[{b}:{b+3}], v60, s[{SWS}:{SWS+3}], 0 offen sc1")
    E(f"  buffer_load_dwordx4 v[{b+4}:{b+7}], v60, s[{SWS}:{SWS+3}], 0 offen offset:1024 sc1")
for i in range(4):
    E(f"  s_sleep {QSLEEP}")
    qissue(i)
E(f"  s_mov_b32 s62, {POLL_MAX}")
E("L_poll1:")
for i in range(4):
    b = 64 + 8 * i
    E("  s_waitcnt vmcnt(6)")
    E(f"  v_xor_b32 v56, s{S_TAG}, v{b+1}")
    for r in (b + 3, b + 5, b + 7):
        E(f"  v_xor_b32 v57, s{S_TAG}, v{r}")
        E("  v_or_b32 v56, v56, v57")
    E("  v_cmp_ne_u32 vcc, 0, v56")
    E(f"  s_cbranch_vccz L_q_ok{i}")
    qissue(i)
E("  s_sub_u32 s62, s62, 1")
E("  s_cmp_lg_u32 s62, 0")
E("  s_cbranch_scc1 L_poll1")
for i in range(4):
    b = 64 + 8 * i
    E(f"L_q_ok{i}:")
    E(f"  v_mov_b32 v{b+1}, v{b+2}")
    E(f"  v_mov_b32 v{b+5}, v{b+6}")
    E(f"  ds_write_b64 v61, v[{b}:{b+1}]")
    E(f"  ds_write_b64 v61, v[{b+4}:{b+5}] offset:512")
    if i < 3:
        E("  s_branch L_q_done")
E("L_q_done:")
STAMP(7)
E("  s_waitcnt lgkmcnt(0)")
E("L_a_noq:")
if MLREP:
    E("  s_lshl_b32 s55, s54, 3")
    E("  s_add_u32 s55, s55, s63")
    E("  s_lshl_b32 s55, s55, 9")
else:
    E("  s_lshl_b32 s55, s54, 9")
E(f"  s_add_u32 s55, s55, {WS_ML}")
E("  v_and_b32 v9, 31, v0")
E("  v_lshlrev_b32 v9, 4, v9")
E("  v_add_u32 v9, s55, v9")
E("  v_lshrrev_b32 v13, 3, v0")
E(f"  s_lshl_b32 s56, s{S_WAVE}, 7")
E("  s_add_u32 s55, s55, s56")
E("  v_lshlrev_b32 v12, 4, v13")
E("  v_add_u32 v12, s55, v12")
E("  s_lshl_b32 s55, s54, 15")
E(f"  s_lshl_b32 s56, s{S_WAVE}, 13")
E("  s_add_u32 s55, s55, s56")
E("  s_lshl_b32 s56, s63, 8")
E("  s_add_u32 s55, s55, s56")
E(f"  s_add_u32 s55, s55, {WS_AP}")
E("  v_lshlrev_b32 v15, 10, v13")
E("  v_lshl_add_u32 v15, v14, 2, v15  ; + (l&7)*32")
E("  v_add_u32 v15, s55, v15")
E("  v_lshlrev_b32 v13, 2, v8")
E("  v_lshl_add_u32 v13, v14, 1, v13")
E(f"  s_lshl_b32 s56, s{S_WAVE}, 7")
E(f"  s_add_u32 s56, s56, {LDS_O3}")
E("  v_add_u32 v13, s56, v13")
E("  v_and_b32 v4, 8, v0")
E("  v_cmp_eq_u32 s[60:61], 0, v4")
E("  v_lshlrev_b32 v4, 4, v2")
E("  v_lshl_add_u32 v62, v3, 2, v8")
E("  v_lshlrev_b32 v62, 14, v62")
E("  s_lshl_b32 s55, s64, 11")
E(f"  s_lshr_b32 s56, s{S_G}, 1")
E("  s_lshl_b32 s56, s56, 5")
E(f"  s_add_u32 s56, s56, s{S_IDX}")
E("  s_lshl_b32 s56, s56, 4")
E("  s_add_u32 s55, s55, s56")
E(f"  s_add_u32 s55, s55, {WS_OP}")
E("  v_add_u32 v62, s55, v62")
E("  s_barrier                        ; BarQ")
if WOLATE:
    E("  s_barrier                        ; BarC")
WO = 16
E(f"  buffer_load_dwordx4 v[{WO}:{WO+3}], v5, s[{SWO}:{SWO+3}], 0 offen {WOF}")
E(f"  buffer_load_dwordx4 v[{WO+4}:{WO+7}], v5, s[{SWO}:{SWO+3}], 0 offen offset:1024 {WOF}")
E(f"  buffer_load_dwordx4 v[{WO+8}:{WO+11}], v5, s[{SWO}:{SWO+3}], 0 offen offset:2048 {WOF}")
E(f"  buffer_load_dwordx4 v[{WO+12}:{WO+15}], v5, s[{SWO}:{SWO+3}], 0 offen offset:3072 {WOF}")
if not WOLATE:
    E("  s_barrier                        ; BarC")
STAMP(3)
E(f"  s_mov_b32 s62, {POLL_MAX}")
E("L_poll2:")
E(f"  buffer_load_dwordx4 v[40:43], v9, s[{SWS}:{SWS+3}], 0 offen sc1")
E(f"  buffer_load_dwordx4 v[44:47], v12, s[{SWS}:{SWS+3}], 0 offen sc1")
E(f"  buffer_load_dwordx4 v[48:51], v15, s[{SWS}:{SWS+3}], 0 offen sc1")
E(f"  buffer_load_dwordx4 v[96:99], v15, s[{SWS}:{SWS+3}], 0 offen offset:16 sc1")
E("  s_waitcnt vmcnt(0)")
if STAMPS:
    E(f"  s_cmp_lg_u32 s62, {POLL_MAX}")
    E("  s_cbranch_scc1 L_d1")
    STAMP(8)
    E("L_d1:")
E(f"  v_xor_b32 v56, s{S_TAG}, v41")
for r in (43, 45, 47, 49, 51, 97, 99):
    E(f"  v_xor_b32 v57, s{S_TAG}, v{r}")
    E("  v_or_b32 v56, v56, v57")
E("  v_cmp_ne_u32 vcc, 0, v56")
E("  s_cbranch_vccz L_poll2_done")
E("  s_sub_u32 s62, s62, 1")
E("  s_cmp_lg_u32 s62, 0")
E("  s_cbranch_scc1 L_poll2")
E("L_poll2_done:")
if STAMPS:
    E(f"  s_sub_u32 s89, {POLL_MAX}, s62")
STAMP(4)
E("  v_mov_b32 v52, v40")
E("  s_nop 1")
E("  v_max_f32_dpp v52, v52, v52 quad_perm:[1,0,3,2] row_mask:0xf bank_mask:0xf")
E("  s_nop 1")
E("  v_max_f32_dpp v52, v52, v52 quad_perm:[2,3,0,1] row_mask:0xf bank_mask:0xf")
E("  s_nop 1")
E("  v_max_f32_dpp v52, v52, v52 row_half_mirror row_mask:0xf bank_mask:0xf")
E("  s_nop 1")
E("  v_max_f32_dpp v52, v52, v52 row_mirror row_mask:0xf bank_mask:0xf")
E("  v_mov_b32 v53, v52")
E("  s_nop 1")
E("  v_permlane16_swap_b32 v52, v53")
E("  s_nop 1")
E("  v_max_f32 v52, v52, v53         ; M")
E("  v_sub_f32 v54, v40, v52")
E("  v_sub_f32 v55, v44, v52")
E("  v_exp_f32 v54, v54")
E("  v_exp_f32 v55, v55")
E("  s_nop 0")
E("  v_mul_f32 v54, v54, v42")
E("  v_mul_f32 v48, v55, v48")
E("  v_mul_f32 v50, v55, v50")
E("  v_mul_f32 v96, v55, v96")
E("  v_mul_f32 v98, v55, v98")
E("  v_add_f32_dpp v54, v54, v54 quad_perm:[1,0,3,2] row_mask:0xf bank_mask:0xf")
E("  v_add_f32_dpp v48, v48, v48 row_ror:8 row_mask:0xf bank_mask:0xf")
E("  v_add_f32_dpp v50, v50, v50 row_ror:8 row_mask:0xf bank_mask:0xf")
E("  v_add_f32_dpp v54, v54, v54 quad_perm:[2,3,0,1] row_mask:0xf bank_mask:0xf")
E("  v_add_f32_dpp v96, v96, v96 row_ror:8 row_mask:0xf bank_mask:0xf")
E("  v_add_f32_dpp v98, v98, v98 row_ror:8 row_mask:0xf bank_mask:0xf")
E("  v_add_f32_dpp v54, v54, v54 row_half_mirror row_mask:0xf bank_mask:0xf")
E("  v_permlane16_swap_b32 v48, v50")
E("  s_nop 0")
E("  v_permlane16_swap_b32 v96, v98")
E("  v_add_f32_dpp v54, v54, v54 row_mirror row_mask:0xf bank_mask:0xf")
E("  v_add_f32 v48, v48, v50")
E("  v_mov_b32 v53, v54")
E("  v_add_f32 v96, v96, v98")
E("  s_nop 1")
E("  v_permlane16_swap_b32 v54, v53")
E("  v_permlane32_swap_b32 v48, v96")
E("  s_nop 1")
E("  v_add_f32 v54, v54, v53         ; L")
E("  v_add_f32 v48, v48, v96")
E("  v_rcp_f32 v54, v54")
E("  s_nop 0")
E("  v_mul_f32 v48, v48, v54")
E("  s_mov_b64 exec, s[60:61]")
E("  ds_write_b32 v13, v48")
E("  s_mov_b64 exec, -1")
E("  s_waitcnt lgkmcnt(0)")
E("  s_barrier                        ; BarO")
for wv in range(4):
    E(f"  ds_read_b128 v[{40+4*wv}:{43+4*wv}], v4 offset:{LDS_O3+wv*128}")
E("  s_waitcnt lgkmcnt(0)")
for j in range(4):
    E(f"  v_add_f32 v{40+j}, v{40+j}, v{44+j}")
    E(f"  v_add_f32 v{48+j}, v{48+j}, v{52+j}")
for j in range(4):
    E(f"  v_add_f32 v{40+j}, v{40+j}, v{48+j}")
E("  v_cvt_pk_bf16_f32 v44, v40, v41")
E("  v_cvt_pk_bf16_f32 v45, v42, v43")
E(f"  v_lshlrev_b32 v{XB}, 16, v44")
E(f"  v_and_b32 v{XB+1}, 0xffff0000, v44")
E(f"  v_lshlrev_b32 v{XB+2}, 16, v45")
E(f"  v_and_b32 v{XB+3}, 0xffff0000, v45")
fma_rows(WO, XB, ACC, 58)
E("  s_nop 1")
for k in range(8):
    E(f"  v_add_f32_dpp v{ACC+k}, v{ACC+k}, v{ACC+k} row_ror:8 row_mask:0xf bank_mask:0xf")
E("  s_nop 1")
for a_, b_ in ((0, 2), (1, 3), (4, 6), (5, 7)):
    E(f"  v_permlane16_swap_b32 v{ACC+a_}, v{ACC+b_}")
E("  s_nop 1")
for a_, b_ in ((0, 2), (1, 3), (4, 6), (5, 7)):
    E(f"  v_add_f32 v{ACC+a_}, v{ACC+a_}, v{ACC+b_}")
E("  s_nop 1")
E(f"  v_permlane32_swap_b32 v{ACC}, v{ACC+4}")
E(f"  v_permlane32_swap_b32 v{ACC+1}, v{ACC+5}")
E("  s_nop 1")
E(f"  v_add_f32 v{ACC}, v{ACC}, v{ACC+4}")
E(f"  v_add_f32 v{ACC+2}, v{ACC+1}, v{ACC+5}")
E(f"  v_mov_b32 v{ACC+1}, s{S_TAG}")
E(f"  v_mov_b32 v{ACC+3}, s{S_TAG}")
E("  s_mov_b64 exec, s[60:61]")
E(f"  buffer_store_dwordx4 v[{ACC}:{ACC+3}], v62, s[{SWS}:{SWS+3}], 0 offen sc1")
E("  s_mov_b64 exec, -1")
STAMP(5)
E(f"  s_cmp_lg_u32 s{S_WAVE}, 0")
E("  s_cbranch_scc1 L_end")
E("  s_lshl_b32 s55, s2, 11")
E(f"  s_add_u32 s55, s55, {WS_OP}")
E("  v_lshlrev_b32 v9, 4, v0")
E("  v_add_u32 v9, s55, v9")
E(f"  s_mov_b32 s62, {POLL_MAX}")
E("L_poll3:")
for k in range(2):
    E(f"  buffer_load_dwordx4 v[{40+4*k}:{43+4*k}], v9, s[{SWS}:{SWS+3}], 0 offen offset:{k*1024} sc1")
E("  s_waitcnt vmcnt(0)")
if STAMPS:
    E(f"  s_cmp_lg_u32 s62, {POLL_MAX}")
    E("  s_cbranch_scc1 L_d2")
    STAMP(10)
    E("L_d2:")
E(f"  v_xor_b32 v56, s{S_TAG}, v41")
for r in (43, 45, 47):
    E(f"  v_xor_b32 v57, s{S_TAG}, v{r}")
    E("  v_or_b32 v56, v56, v57")
E("  v_cmp_ne_u32 vcc, 0, v56")
E("  s_cbranch_vccz L_poll3_done")
E("  s_sub_u32 s62, s62, 1")
E("  s_cmp_lg_u32 s62, 0")
E("  s_cbranch_scc1 L_poll3")
E("L_poll3_done:")
if STAMPS:
    E(f"  s_sub_u32 s91, {POLL_MAX}, s62")
STAMP(6)
E("  v_add_f32 v40, v40, v44")
E("  v_add_f32 v42, v42, v46")
E("  s_nop 1")
E("  v_permlane16_swap_b32 v40, v42")
E("  s_nop 1")
E("  v_add_f32 v40, v40, v42")
E("  v_mov_b32 v42, v40")
E("  s_nop 1")
E("  v_permlane32_swap_b32 v40, v42")
E("  s_nop 1")
E("  v_add_f32 v40, v40, v42")
E("  s_nop 1")
E("  v_add_f32_dpp v40, v40, v40 quad_perm:[1,0,3,2] row_mask:0xf bank_mask:0xf")
E("  s_nop 1")
E("  v_add_f32_dpp v40, v40, v40 quad_perm:[2,3,0,1] row_mask:0xf bank_mask:0xf")
E("  s_nop 1")
E("  v_add_f32_dpp v40, v40, v40 row_half_mirror row_mask:0xf bank_mask:0xf")
E("  s_nop 1")
E("  v_add_f32_dpp v40, v40, v40 row_mirror row_mask:0xf bank_mask:0xf")
E("  s_nop 1")
E("  v_readlane_b32 s55, v40, 16")
E("  v_mov_b32 v42, s55")
E("  v_cvt_pk_bf16_f32 v40, v40, v42")
E(f"  s_lshl_b32 s55, s{S_G}, 7")
E(f"  s_lshl_b32 s56, s{S_IDX}, 2")
E("  s_add_u32 s55, s55, s56")
E("  v_mov_b32 v9, s55")
E("  v_cmp_gt_u32 vcc, 1, v0")
E("  s_and_saveexec_b64 s[60:61], vcc")
E(f"  buffer_store_dword v40, v9, s[{SOUT}:{SOUT+3}], 0 offen")
E("  s_cmp_lg_u32 s2, 0")
E("  s_cbranch_scc1 L_a_nononce")
E(f"  v_mov_b32 v40, s{S_TAG}")
E(f"  v_mov_b32 v9, {WS_NONCE}")
E(f"  buffer_store_dword v40, v9, s[{SWS}:{SWS+3}], 0 offen sc1")
E("L_a_nononce:")
E("  s_mov_b64 exec, s[60:61]")
E("  s_branch L_end")

E("L_bwave:")
E(f"  s_sub_u32 s{S_WAVE}, s{S_WAVE}, 4   ; b")
E(f"  s_lshl_b32 s54, s{S_G}, 15")
E("  s_add_u32 s54, s54, 28672")
E(f"  s_lshl_b32 s55, s{S_IDX}, 7")
E("  s_add_u32 s54, s54, s55")
E(f"  s_lshl_b32 s55, s{S_WAVE}, 5")
E("  s_add_u32 s54, s54, s55")
E("  s_lshl_b32 s54, s54, 8")
E("  v_and_b32 v2, 15, v0")
E("  v_lshrrev_b32 v3, 4, v0")
E("  v_lshlrev_b32 v4, 8, v2")
E("  v_lshl_add_u32 v4, v3, 4, v4")
E("  v_add_u32 v4, s54, v4")
E("  s_movk_i32 s56, 0x1000")
KR = 16
def kload(n):
    tt, ks = n >> 2, n & 3
    so = "0" if tt == 0 else "s56"
    r = KR + (tt * 4 + ks) * 4
    E(f"  buffer_load_dwordx4 v[{r}:{r+3}], v4, s[{SK}:{SK+3}], {so} offen offset:{ks*64} {KVF}")
for n in range(KPRE):
    kload(n)
E("  v_lshlrev_b32 v5, 1, v3")
E("  v_xor_b32 v5, v5, v2")
E("  v_lshlrev_b32 v6, 8, v3")
E("  v_lshl_add_u32 v7, v5, 4, v6")
E("  v_add_u32 v7, s54, v7")
E("  v_xor_b32 v5, 8, v5")
E("  v_lshl_add_u32 v8, v5, 4, v6")
E("  v_add_u32 v8, s54, v8")
E("  v_add_u32 v8, 0x400, v8")
E(f"  s_lshl_b32 s57, s{S_WAVE}, 13")
E("  v_and_b32 v9, 3, v0")
E("  v_lshlrev_b32 v9, 8, v9")
E("  v_lshl_add_u32 v9, v3, 4, v9")
E(f"  v_add_u32 v9, {LDS_Q}, v9")
E("  v_lshrrev_b32 v10, 2, v2")
E("  v_lshl_add_u32 v10, v3, 2, v10")
E("  v_and_b32 v11, 7, v10")
E("  v_lshlrev_b32 v11, 5, v11")
E("  v_lshl_add_u32 v11, v10, 8, v11")
E("  v_and_b32 v12, 3, v0")
E("  v_lshl_add_u32 v11, v12, 3, v11")
E("  v_add_u32 v11, s57, v11")
E("  v_and_b32 v13, 3, v0")
E("  v_lshlrev_b32 v14, 3, v13")
E("  v_lshlrev_b32 v13, 9, v13")
E("  v_lshl_add_u32 v13, v3, 4, v13")
E(f"  s_lshl_b32 s55, s{S_WAVE}, 11")
E(f"  s_add_u32 s55, s55, {LDS_OPART}")
E("  v_add_u32 v13, s55, v13")
E(f"  s_lshl_b32 s55, s{S_WAVE}, 5")
E(f"  s_add_u32 s55, s55, {LDS_MLP}")
E("  v_add_u32 v14, s55, v14")
E(f"  s_lshl_b32 s55, s{S_WAVE}, 9")
E(f"  s_add_u32 s55, s55, {LDS_OPART}")
E("  v_lshlrev_b32 v15, 3, v0")
E("  v_add_u32 v15, s55, v15")
E(f"  s_lshl_b32 s55, s{S_G}, 2")
E(f"  s_add_u32 s55, s55, s{S_WAVE}")
E("  s_lshl_b32 s55, s55, 5")
E(f"  s_add_u32 s55, s55, s{S_IDX}     ; (g*4+b)*32 + split")
E("  s_lshl_b32 s59, s55, 10")
E(f"  s_add_u32 s59, s59, {WS_AP}")
E("  v_lshlrev_b32 v116, 4, v0")
E("  v_add_u32 v116, s59, v116")
if MLREP:
    E(f"  s_lshl_b32 s59, s{S_G}, 2")
    E(f"  s_add_u32 s59, s59, s{S_WAVE}")
    E("  s_lshl_b32 s59, s59, 12")
    E(f"  s_lshl_b32 s62, s{S_IDX}, 4")
    E("  s_add_u32 s59, s59, s62")
    E(f"  s_add_u32 s59, s59, {WS_ML}")
    E("  v_lshlrev_b32 v117, 9, v0")
    E("  v_add_u32 v117, s59, v117")
else:
    E("  s_lshl_b32 s59, s55, 4")
    E(f"  s_add_u32 s59, s59, {WS_ML}")
    E("  v_mov_b32 v117, s59")
E(f"  s_lshl_b32 s55, s{S_WAVE}, 3")
E(f"  s_add_u32 s55, s55, {LDS_MLP}")
E("  v_mov_b32 v118, s55")
E("  v_cmp_gt_u32 s[60:61], 4, v2")
E("  s_barrier                        ; Bar1")
E("  s_barrier                        ; Bar2")
STAMP(7)
for n in range(KPRE, 8):
    kload(n)
for i in range(8):
    E(f"  s_add_u32 m0, s57, {i*1024}")
    E(f"  s_movk_i32 s58, {(i>>1)*2048}")
    E(f"  buffer_load_dwordx4 v{7 + (i&1)}, s[{SV}:{SV+3}], s58 offen {KVF} lds")
STAMP(8)
E("  s_mov_b32 s58, 0x3db504f3       ; 128^-0.5 (f32)")
E("  s_mov_b32 s59, 0x3fb8aa3b       ; log2(e)")
E("  s_waitcnt vmcnt(8) lgkmcnt(0)")
E(f"  s_add_u32 s{S_TAG}, s{S_TAG}, 1")
STAMP(1)
E("  s_barrier                        ; BarQ")
STAMP(2)
QF = 48
for ks in range(4):
    E(f"  ds_read_b128 v[{QF+4*ks}:{QF+4*ks+3}], v9 offset:{ks*64}")
SC = 64
for ks in range(4):
    E(f"  s_waitcnt lgkmcnt({3-ks})")
    for tt in range(2):
        r = KR + (tt * 4 + ks) * 4
        c = "0" if ks == 0 else f"v[{SC+4*tt}:{SC+4*tt+3}]"
        E(f"  v_mfma_f32_16x16x32_bf16 v[{SC+4*tt}:{SC+4*tt+3}], v[{r}:{r+3}], v[{QF+4*ks}:{QF+4*ks+3}], {c}")
E("  s_nop 7")
E("  s_nop 3")
for j in range(4):
    E(f"  v_cvt_pk_bf16_f32 v{72+j}, v{SC+2*j}, v{SC+2*j+1}")
for j in range(4):
    E(f"  v_lshlrev_b32 v{SC+2*j}, 16, v{72+j}")
    E(f"  v_and_b32 v{SC+2*j+1}, 0xffff0000, v{72+j}")
for j in range(8):
    E(f"  v_mul_f32 v{SC+j}, s58, v{SC+j}")
for j in range(4):
    E(f"  v_cvt_pk_bf16_f32 v{72+j}, v{SC+2*j}, v{SC+2*j+1}")
for j in range(4):
    E(f"  v_lshlrev_b32 v{SC+2*j}, 16, v{72+j}")
    E(f"  v_and_b32 v{SC+2*j+1}, 0xffff0000, v{72+j}")
for j in range(8):
    E(f"  v_mul_f32 v{SC+j}, s59, v{SC+j}")
E(f"  v_max3_f32 v76, v{SC}, v{SC+1}, v{SC+2}")
E(f"  v_max3_f32 v77, v{SC+3}, v{SC+4}, v{SC+5}")
E(f"  v_max3_f32 v76, v76, v{SC+6}, v{SC+7}")
E("  v_max_f32 v76, v76, v77")
E("  v_mov_b32 v77, v76")
E("  s_nop 1")
E("  v_permlane16_swap_b32 v76, v77")
E("  s_nop 1")
E("  v_max_f32 v76, v76, v77")
E("  v_mov_b32 v77, v76")
E("  s_nop 1")
E("  v_permlane32_swap_b32 v76, v77")
E("  s_nop 1")
E("  v_max_f32 v76, v76, v77         ; m_w")
for j in range(8):
    E(f"  v_sub_f32 v{SC+j}, v{SC+j}, v76")
for j in range(8):
    E(f"  v_exp_f32 v{SC+j}, v{SC+j}")
E("  s_nop 0")
for j in range(4):
    E(f"  v_cvt_pk_bf16_f32 v{72+j}, v{SC+2*j}, v{SC+2*j+1}")
E(f"  v_add_f32 v77, v{SC}, v{SC+1}")
E(f"  v_add_f32 v78, v{SC+2}, v{SC+3}")
E(f"  v_add_f32 v79, v{SC+4}, v{SC+5}")
E(f"  v_add_f32 v80, v{SC+6}, v{SC+7}")
E("  v_add_f32 v77, v77, v78")
E("  v_add_f32 v79, v79, v80")
E("  v_add_f32 v77, v77, v79")
E("  v_mov_b32 v78, v77")
E("  s_nop 1")
E("  v_permlane16_swap_b32 v77, v78")
E("  s_nop 1")
E("  v_add_f32 v77, v77, v78")
E("  v_mov_b32 v78, v77")
E("  s_nop 1")
E("  v_permlane32_swap_b32 v77, v78")
E("  s_nop 1")
E("  v_add_f32 v77, v77, v78         ; l_w")
STAMP(3)
E("  s_waitcnt vmcnt(0)")
STAMP(4)
VF = 84
for t in range(8):
    E(f"  v_xor_b32 v12, {t*32}, v11")
    E(f"  ds_read_b64_tr_b16 v[{VF+4*t}:{VF+4*t+1}], v12")
    E(f"  ds_read_b64_tr_b16 v[{VF+4*t+2}:{VF+4*t+3}], v12 offset:4096")
OA = 16
for t in range(8):
    E(f"  s_waitcnt lgkmcnt({14-2*t})")
    E(f"  v_mfma_f32_16x16x32_bf16 v[{OA+4*t}:{OA+4*t+3}], v[{VF+4*t}:{VF+4*t+3}], v[72:75], 0")
E("  s_mov_b64 exec, s[60:61]")
E("  ds_write_b64 v14, v[76:77]")
E("  s_nop 4")
for t in range(8):
    E(f"  ds_write_b128 v13, v[{OA+4*t}:{OA+4*t+3}] offset:{64*t}")
E("  s_mov_b64 exec, -1")
E("  s_waitcnt lgkmcnt(0)")
E("  s_barrier                        ; BarC")
STAMP(5)
for wv in range(4):
    E(f"  ds_read_b64 v[{48+2*wv}:{49+2*wv}], v118 offset:{wv*32}")
for wv in range(4):
    E(f"  ds_read_b64 v[{56+2*wv}:{57+2*wv}], v15 offset:{wv*2048}")
E("  s_waitcnt lgkmcnt(4)")
E("  v_max3_f32 v32, v48, v50, v52")
E("  v_max_f32 v32, v32, v54         ; M")
for wv in range(4):
    E(f"  v_sub_f32 v{33+wv}, v{48+2*wv}, v32")
for wv in range(4):
    E(f"  v_exp_f32 v{33+wv}, v{33+wv}")
E("  s_nop 0")
E("  v_mul_f32 v38, v33, v49")
for wv in range(1, 4):
    E(f"  v_fmac_f32 v38, v{33+wv}, v{49+2*wv}")
E("  s_waitcnt lgkmcnt(0)")
E("  v_mul_f32 v40, v33, v56")
E("  v_mul_f32 v42, v33, v57")
for wv in range(1, 4):
    E(f"  v_fmac_f32 v40, v{33+wv}, v{56+2*wv}")
    E(f"  v_fmac_f32 v42, v{33+wv}, v{57+2*wv}")
E(f"  v_mov_b32 v41, s{S_TAG}")
E(f"  v_mov_b32 v43, s{S_TAG}")
E(f"  buffer_store_dwordx4 v[40:43], v116, s[{SWS}:{SWS+3}], 0 offen sc1")
E("  v_mov_b32 v44, v32")
E(f"  v_mov_b32 v45, s{S_TAG}")
E("  v_mov_b32 v46, v38")
E(f"  v_mov_b32 v47, s{S_TAG}")
E(f"  v_cmp_gt_u32 vcc, {8 if MLREP else 1}, v0")
E("  s_and_saveexec_b64 s[60:61], vcc")
E(f"  buffer_store_dwordx4 v[44:47], v117, s[{SWS}:{SWS+3}], 0 offen sc1")
E("  s_mov_b64 exec, s[60:61]")

E("L_end:")
if STAMPS:
    STAMP(15)
    E("  s_mov_b64 exec, -1")
    E("  v_mov_b32 v40, 0")
    for i in range(16):
        E(f"  v_writelane_b32 v40, s{80+i}, {i}")
    E("  s_lshl_b32 s55, s2, 3")
    E("  s_add_u32 s55, s55, s34")
    E("  s_lshl_b32 s55, s55, 6")
    E(f"  s_add_u32 s55, s55, {WS_STAMP}")
    E("  v_lshlrev_b32 v9, 2, v0")
    E("  v_add_u32 v9, s55, v9")
    E("  v_cmp_gt_u32 vcc, 16, v0")
    E("  s_and_saveexec_b64 s[60:61], vcc")
    E(f"  buffer_store_dword v40, v9, s[{SWS}:{SWS+3}], 0 offen")
    E("  s_mov_b64 exec, s[60:61]")
E("L_end2:")
E("  s_endpgm")
E('.section .rodata,"a"')
E(".p2align 6")
E(".amdhsa_kernel standalone__sliding_block_cached__decode_kernel")
E("  .amdhsa_next_free_vgpr 128")
E("  .amdhsa_next_free_sgpr 100")
E("  .amdhsa_accum_offset 128")
E("  .amdhsa_group_segment_fixed_size 0")
E("  .amdhsa_kernarg_size 64")
E("  .amdhsa_user_sgpr_count 2")
E("  .amdhsa_user_sgpr_kernarg_segment_ptr 1")
E("  .amdhsa_system_sgpr_workgroup_id_x 1")
E(".end_amdhsa_kernel")
open(OUT, "w").write("\n".join(L) + "\n")
print("wrote", OUT, len(L), "lines")
```

```python
import sys, os

OUT = sys.argv[1] if len(sys.argv) > 1 else "standalone__sliding_block_cached__decode.s"
L = []
def E(s=""):
    L.append(s)
STAMPS = int(os.environ.get("STAMPS", "0"))
KPRE = int(os.environ.get("KPRE", "4"))
VPRE = int(os.environ.get("VPRE", "0"))
WB = int(os.environ.get("WB", "8"))
WC = int(os.environ.get("WC", "8"))
KVF = os.environ.get("KVF", "nt")
WQF = os.environ.get("WQF", "nt")
WOF = os.environ.get("WOF", "nt")
WOLATE = int(os.environ.get("WOLATE", "0"))
QSLEEP = int(os.environ.get("QSLEEP", "12"))
MLREP = int(os.environ.get("MLREP", "0"))
ROT3 = int(os.environ.get("ROT3", "0"))
def STAMP(i):
    if STAMPS:
        E("  s_memrealtime s[78:79]")
        E("  s_waitcnt lgkmcnt(0)")
        E(f"  s_mov_b32 s{80+i}, s78")

WS_NONCE = 0
WS_QP = 0x10000
WS_ML = 0x30000 if not MLREP else 0x240000
WS_AP = 0x40000
WS_OP = 0x140000
WS_SIZE = 0x260000 if not STAMPS else 0x400000
WS_STAMP = 0x300000

LDS_V = 0
LDS_Q = 32768
LDS_OPART = 33792
LDS_MLP = 41984
LDS_P1 = 42240
LDS_O3 = 42496
LDS_SIZE = 43008

POLL_MAX = 200000

hdr = open("standalone__sliding_block_cached__decode.s.ref").read().split("\n")
for ln in hdr:
    if ln.startswith("; @launch"):
        break
    E(ln)
E(f"; @launch grid=(256,1,1) block=(768,1,1) lds={LDS_SIZE}")
E('.amdgcn_target "amdgcn-amd-amdhsa--gfx950"')
E(".text")
E(".globl standalone__sliding_block_cached__decode_kernel")
E(".p2align 8")
E(".type standalone__sliding_block_cached__decode_kernel,@function")
E("standalone__sliding_block_cached__decode_kernel:")

SX, SK, SV, SWQ, SWO, SOUT, SWS = 4, 8, 12, 16, 20, 24, 28
S_TAG, S_WAVE = 32, 33
S_G, S_IDX = 52, 53
def srd(base, ptr_lo, nbytes):
    E(f"  s_mov_b32 s{base}, s{ptr_lo}")
    E(f"  s_and_b32 s{base+1}, s{ptr_lo+1}, 0xffff")
    E(f"  s_mov_b32 s{base+2}, {nbytes}")
    E(f"  s_mov_b32 s{base+3}, 0x00020000")

E("  s_cmp_ge_u32 s2, 256")
E("  s_cbranch_scc1 L_end2")
E("  s_load_dwordx16 s[36:51], s[0:1], 0")
E("  v_lshrrev_b32 v1, 6, v0")
E("  v_and_b32 v0, 63, v0            ; lane")
E(f"  s_and_b32 s{S_G}, s2, 7")
E(f"  s_lshr_b32 s{S_IDX}, s2, 3")
E(f"  v_readfirstlane_b32 s{S_WAVE}, v1")
if STAMPS:
    for i in range(16):
        E(f"  s_mov_b32 s{80+i}, 0")
    E(f"  s_mov_b32 s34, s{S_WAVE}")
STAMP(0)
E("  s_waitcnt lgkmcnt(0)")
E(f"  s_load_dword s{S_TAG}, s[50:51], {WS_NONCE}")
srd(SX, 36, 1024)
srd(SK, 38, 67108864)
srd(SV, 40, 67108864)
srd(SWQ, 42, 4194304)
srd(SWO, 44, 4194304)
srd(SOUT, 46, 1024)
srd(SWS, 50, WS_SIZE)
E(f"  s_cmp_ge_u32 s{S_WAVE}, 8")
E("  s_cbranch_scc1 L_cwave")
E(f"  s_cmp_ge_u32 s{S_WAVE}, 4")
E("  s_cbranch_scc1 L_bwave")

def fma_rows(wbase, xb, acc, tmp):
    for i in range(4):
        for k in range(4):
            w = wbase + 4 * i + k
            E(f"  v_lshlrev_b32 v{tmp}, 16, v{w}")
            E(f"  v_and_b32 v{tmp+1}, 0xffff0000, v{w}")
            if i == 0:
                E(f"  v_mul_f32 v{acc+2*k}, v{xb+i}, v{tmp}")
                E(f"  v_mul_f32 v{acc+2*k+1}, v{xb+i}, v{tmp+1}")
            else:
                E(f"  v_fmac_f32 v{acc+2*k}, v{xb+i}, v{tmp}")
                E(f"  v_fmac_f32 v{acc+2*k+1}, v{xb+i}, v{tmp+1}")

E("L_awave:")
E("  s_setprio 3")
E("  v_lshrrev_b32 v2, 1, v0         ; j")
E("  v_and_b32 v3, 1, v0             ; hf")
E(f"  s_add_u32 s55, s{S_G}, 1")
E("  s_and_b32 s55, s55, 7")
E("  s_lshl_b32 s55, s55, 9")
E(f"  s_lshl_b32 s56, s{S_IDX}, 4")
E("  s_add_u32 s55, s55, s56")
E(f"  s_lshl_b32 s56, s{S_WAVE}, 7")
E("  v_lshlrev_b32 v4, 2, v2")
E("  v_add_u32 v4, s56, v4           ; row0")
E("  v_lshlrev_b32 v5, 1, v4")
E(f"  buffer_load_dwordx2 v[6:7], v5, s[{SX}:{SX+3}], 0 offen")
E("  v_lshlrev_b32 v5, 13, v4")
E("  v_lshl_add_u32 v5, v3, 4, v5")
E("  s_lshl_b32 s57, s55, 1")
E("  v_add_u32 v5, s57, v5")
E("  s_movk_i32 s56, 0x2000")
E("  s_movk_i32 s57, 0x4000")
E("  s_movk_i32 s58, 0x6000")
WQ = 16
E(f"  buffer_load_dwordx4 v[{WQ}:{WQ+3}], v5, s[{SWQ}:{SWQ+3}], 0 offen {WQF}")
E(f"  buffer_load_dwordx4 v[{WQ+4}:{WQ+7}], v5, s[{SWQ}:{SWQ+3}], s56 offen {WQF}")
E(f"  buffer_load_dwordx4 v[{WQ+8}:{WQ+11}], v5, s[{SWQ}:{SWQ+3}], s57 offen {WQF}")
E(f"  buffer_load_dwordx4 v[{WQ+12}:{WQ+15}], v5, s[{SWQ}:{SWQ+3}], s58 offen {WQF}")
E("  v_lshrrev_b32 v8, 4, v0         ; R")
E("  v_lshl_add_u32 v9, v3, 3, v8    ; 8hf + R")
E("  v_lshlrev_b32 v9, 2, v9")
E(f"  s_lshl_b32 s56, s{S_WAVE}, 6")
E(f"  s_add_u32 s56, s56, {LDS_P1}")
E("  v_add_u32 v9, s56, v9")
E("  v_and_b32 v14, 7, v0")
E("  v_lshlrev_b32 v14, 3, v14")
E("  s_lshl_b32 s56, s55, 2")
E(f"  s_add_u32 s56, s56, {WS_QP}")
E("  v_add_u32 v15, s56, v14")
E("  v_and_b32 v12, 14, v0")
E("  v_cmp_eq_u32 s[60:61], 0, v12")
E("  v_cmp_gt_u32 s[74:75], 8, v0")
E(f"  s_lshr_b32 s55, s{S_G}, 1")
E("  s_add_u32 s55, s55, 1")
E("  s_and_b32 s55, s55, 3")
E("  s_lshl_b32 s55, s55, 3")
E(f"  s_lshr_b32 s54, s{S_IDX}, 2")
E("  s_add_u32 s54, s54, s55         ; h3")
E(f"  s_and_b32 s63, s{S_IDX}, 3       ; quarter")
E(f"  s_and_b32 s64, s{S_G}, 1")
E("  s_xor_b32 s64, s64, 1")
E(f"  s_lshl_b32 s65, s{S_WAVE}, 1")
E("  s_add_u32 s64, s64, s65")
E(f"  s_lshl_b32 s55, s{S_G}, 11")
E(f"  s_add_u32 s55, s55, {WS_QP}")
E("  v_lshlrev_b32 v60, 4, v0")
E("  v_add_u32 v60, s55, v60")
E("  v_lshlrev_b32 v61, 3, v0")
E(f"  v_add_u32 v61, {LDS_Q}, v61")
E("  s_waitcnt vmcnt(0) lgkmcnt(0)")
E(f"  s_add_u32 s{S_TAG}, s{S_TAG}, 1")
STAMP(1)
XB = 10
E(f"  v_lshlrev_b32 v{XB}, 16, v6")
E(f"  v_and_b32 v{XB+1}, 0xffff0000, v6")
E(f"  v_lshlrev_b32 v{XB+2}, 16, v7")
E(f"  v_and_b32 v{XB+3}, 0xffff0000, v7")
ACC = 32
fma_rows(WQ, XB, ACC, 58)
E("  s_nop 1")
for k in range(8):
    E(f"  v_add_f32_dpp v{ACC+k}, v{ACC+k}, v{ACC+k} quad_perm:[2,3,0,1] row_mask:0xf bank_mask:0xf")
for k in range(8):
    E(f"  v_add_f32_dpp v{ACC+k}, v{ACC+k}, v{ACC+k} row_ror:4 row_mask:0xf bank_mask:0xf")
for k in range(8):
    E(f"  v_add_f32_dpp v{ACC+k}, v{ACC+k}, v{ACC+k} row_ror:8 row_mask:0xf bank_mask:0xf")
E("  s_nop 1")
for k in range(4):
    E(f"  v_permlane16_swap_b32 v{ACC+2*k}, v{ACC+2*k+1}")
E("  s_nop 1")
for k in range(4):
    E(f"  v_add_f32 v{ACC+2*k}, v{ACC+2*k}, v{ACC+2*k+1}")
E("  s_nop 1")
E(f"  v_permlane32_swap_b32 v{ACC}, v{ACC+2}")
E(f"  v_permlane32_swap_b32 v{ACC+4}, v{ACC+6}")
E("  s_nop 1")
E(f"  v_add_f32 v{ACC}, v{ACC}, v{ACC+2}")
E(f"  v_add_f32 v{ACC+4}, v{ACC+4}, v{ACC+6}")
E("  s_mov_b64 exec, s[60:61]")
E(f"  ds_write2_b32 v9, v{ACC}, v{ACC+4} offset0:0 offset1:4")
E("  s_mov_b64 exec, -1")
E("  v_and_b32 v3, 7, v0             ; c")
E("  v_lshrrev_b32 v2, 3, v0         ; rgrp")
E("  s_lshl_b32 s55, s54, 7")
E("  s_lshl_b32 s56, s63, 5")
E("  s_add_u32 s55, s55, s56")
E("  v_lshlrev_b32 v4, 2, v2")
E("  v_add_u32 v4, s55, v4           ; row0")
E("  v_lshlrev_b32 v5, 10, v4")
E("  v_lshl_add_u32 v5, v3, 4, v5")
E("  s_lshl_b32 s56, s64, 7")
E("  v_add_u32 v5, s56, v5")
E("  s_waitcnt lgkmcnt(0)")
E("  s_barrier                        ; Bar1")
E(f"  s_cmp_lg_u32 s{S_WAVE}, 0")
E("  s_cbranch_scc1 L_a_nopub")
for wv in range(4):
    E(f"  ds_read_b64 v[{40+2*wv}:{41+2*wv}], v14 offset:{LDS_P1+wv*64}")
E("  s_waitcnt lgkmcnt(0)")
E("  v_add_f32 v40, v40, v42")
E("  v_add_f32 v41, v41, v43")
E("  v_add_f32 v44, v44, v46")
E("  v_add_f32 v45, v45, v47")
E("  v_add_f32 v40, v40, v44")
E("  v_add_f32 v41, v41, v45")
E("  v_cvt_pk_bf16_f32 v40, v40, v41")
E(f"  v_mov_b32 v41, s{S_TAG}")
E("  s_mov_b64 exec, s[74:75]")
E(f"  buffer_store_dwordx2 v[40:41], v15, s[{SWS}:{SWS+3}], 0 offen sc1")
E("  s_mov_b64 exec, -1")
E("L_a_nopub:")
E("  s_barrier")
STAMP(2)
E(f"  s_cmp_lg_u32 s{S_WAVE}, 1")
E("  s_cbranch_scc1 L_a_noq")
def qissue(i):
    b = 64 + 8 * i
    E(f"  buffer_load_dwordx4 v[{b}:{b+3}], v60, s[{SWS}:{SWS+3}], 0 offen sc1")
    E(f"  buffer_load_dwordx4 v[{b+4}:{b+7}], v60, s[{SWS}:{SWS+3}], 0 offen offset:1024 sc1")
for i in range(4):
    E(f"  s_sleep {QSLEEP}")
    qissue(i)
E(f"  s_mov_b32 s62, {POLL_MAX}")
E("L_poll1:")
for i in range(4):
    b = 64 + 8 * i
    E("  s_waitcnt vmcnt(6)")
    E(f"  v_xor_b32 v56, s{S_TAG}, v{b+1}")
    for r in (b + 3, b + 5, b + 7):
        E(f"  v_xor_b32 v57, s{S_TAG}, v{r}")
        E("  v_or_b32 v56, v56, v57")
    E("  v_cmp_ne_u32 vcc, 0, v56")
    E(f"  s_cbranch_vccz L_q_ok{i}")
    qissue(i)
E("  s_sub_u32 s62, s62, 1")
E("  s_cmp_lg_u32 s62, 0")
E("  s_cbranch_scc1 L_poll1")
for i in range(4):
    b = 64 + 8 * i
    E(f"L_q_ok{i}:")
    E(f"  v_mov_b32 v{b+1}, v{b+2}")
    E(f"  v_mov_b32 v{b+5}, v{b+6}")
    E(f"  ds_write_b64 v61, v[{b}:{b+1}]")
    E(f"  ds_write_b64 v61, v[{b+4}:{b+5}] offset:512")
    if i < 3:
        E("  s_branch L_q_done")
E("L_q_done:")
STAMP(7)
E("  s_waitcnt lgkmcnt(0)")
E("L_a_noq:")
if MLREP:
    E("  s_lshl_b32 s55, s54, 3")
    E("  s_add_u32 s55, s55, s63")
    E("  s_lshl_b32 s55, s55, 9")
else:
    E("  s_lshl_b32 s55, s54, 9")
E(f"  s_add_u32 s55, s55, {WS_ML}")
E("  v_and_b32 v9, 31, v0")
E("  v_lshlrev_b32 v9, 4, v9")
E("  v_add_u32 v9, s55, v9")
E("  v_lshrrev_b32 v13, 3, v0")
E(f"  s_lshl_b32 s56, s{S_WAVE}, 7")
E("  s_add_u32 s55, s55, s56")
E("  v_lshlrev_b32 v12, 4, v13")
E("  v_add_u32 v12, s55, v12")
E("  s_lshl_b32 s55, s54, 15")
E(f"  s_lshl_b32 s56, s{S_WAVE}, 13")
E("  s_add_u32 s55, s55, s56")
E("  s_lshl_b32 s56, s63, 8")
E("  s_add_u32 s55, s55, s56")
E(f"  s_add_u32 s55, s55, {WS_AP}")
E("  v_lshlrev_b32 v15, 10, v13")
E("  v_lshl_add_u32 v15, v14, 2, v15  ; + (l&7)*32")
E("  v_add_u32 v15, s55, v15")
E("  v_lshlrev_b32 v13, 2, v8")
E("  v_lshl_add_u32 v13, v14, 1, v13")
E(f"  s_lshl_b32 s56, s{S_WAVE}, 7")
E(f"  s_add_u32 s56, s56, {LDS_O3}")
E("  v_add_u32 v13, s56, v13")
E("  v_and_b32 v4, 8, v0")
E("  v_cmp_eq_u32 s[60:61], 0, v4")
E("  v_lshlrev_b32 v4, 4, v2")
E("  v_lshl_add_u32 v62, v3, 2, v8")
E("  v_lshlrev_b32 v62, 14, v62")
E("  s_lshl_b32 s55, s64, 11")
E(f"  s_lshr_b32 s56, s{S_G}, 1")
E("  s_lshl_b32 s56, s56, 5")
E(f"  s_add_u32 s56, s56, s{S_IDX}")
E("  s_lshl_b32 s56, s56, 4")
E("  s_add_u32 s55, s55, s56")
E(f"  s_add_u32 s55, s55, {WS_OP}")
E("  v_add_u32 v62, s55, v62")
E("  s_barrier                        ; BarQ")
BARV_A = True
if WOLATE:
    E("  s_barrier                        ; BarC")
WO = 16
E(f"  buffer_load_dwordx4 v[{WO}:{WO+3}], v5, s[{SWO}:{SWO+3}], 0 offen {WOF}")
E(f"  buffer_load_dwordx4 v[{WO+4}:{WO+7}], v5, s[{SWO}:{SWO+3}], 0 offen offset:1024 {WOF}")
E(f"  buffer_load_dwordx4 v[{WO+8}:{WO+11}], v5, s[{SWO}:{SWO+3}], 0 offen offset:2048 {WOF}")
E(f"  buffer_load_dwordx4 v[{WO+12}:{WO+15}], v5, s[{SWO}:{SWO+3}], 0 offen offset:3072 {WOF}")
E("  s_barrier                        ; BarV")
E("  s_barrier                        ; BarC")
STAMP(3)
E(f"  s_mov_b32 s62, {POLL_MAX}")
E("L_poll2:")
E(f"  buffer_load_dwordx4 v[40:43], v9, s[{SWS}:{SWS+3}], 0 offen sc1")
E(f"  buffer_load_dwordx4 v[44:47], v12, s[{SWS}:{SWS+3}], 0 offen sc1")
E(f"  buffer_load_dwordx4 v[48:51], v15, s[{SWS}:{SWS+3}], 0 offen sc1")
E(f"  buffer_load_dwordx4 v[96:99], v15, s[{SWS}:{SWS+3}], 0 offen offset:16 sc1")
E("  s_waitcnt vmcnt(0)")
if STAMPS:
    E(f"  s_cmp_lg_u32 s62, {POLL_MAX}")
    E("  s_cbranch_scc1 L_d1")
    STAMP(8)
    E("L_d1:")
E(f"  v_xor_b32 v56, s{S_TAG}, v41")
for r in (43, 45, 47, 49, 51, 97, 99):
    E(f"  v_xor_b32 v57, s{S_TAG}, v{r}")
    E("  v_or_b32 v56, v56, v57")
E("  v_cmp_ne_u32 vcc, 0, v56")
E("  s_cbranch_vccz L_poll2_done")
E("  s_sub_u32 s62, s62, 1")
E("  s_cmp_lg_u32 s62, 0")
E("  s_cbranch_scc1 L_poll2")
E("L_poll2_done:")
if STAMPS:
    E(f"  s_sub_u32 s89, {POLL_MAX}, s62")
STAMP(4)
E("  v_mov_b32 v52, v40")
E("  s_nop 1")
E("  v_max_f32_dpp v52, v52, v52 quad_perm:[1,0,3,2] row_mask:0xf bank_mask:0xf")
E("  s_nop 1")
E("  v_max_f32_dpp v52, v52, v52 quad_perm:[2,3,0,1] row_mask:0xf bank_mask:0xf")
E("  s_nop 1")
E("  v_max_f32_dpp v52, v52, v52 row_half_mirror row_mask:0xf bank_mask:0xf")
E("  s_nop 1")
E("  v_max_f32_dpp v52, v52, v52 row_mirror row_mask:0xf bank_mask:0xf")
E("  v_mov_b32 v53, v52")
E("  s_nop 1")
E("  v_permlane16_swap_b32 v52, v53")
E("  s_nop 1")
E("  v_max_f32 v52, v52, v53         ; M")
E("  v_sub_f32 v54, v40, v52")
E("  v_sub_f32 v55, v44, v52")
E("  v_exp_f32 v54, v54")
E("  v_exp_f32 v55, v55")
E("  s_nop 0")
E("  v_mul_f32 v54, v54, v42")
E("  v_mul_f32 v48, v55, v48")
E("  v_mul_f32 v50, v55, v50")
E("  v_mul_f32 v96, v55, v96")
E("  v_mul_f32 v98, v55, v98")
E("  v_add_f32_dpp v54, v54, v54 quad_perm:[1,0,3,2] row_mask:0xf bank_mask:0xf")
E("  v_add_f32_dpp v48, v48, v48 row_ror:8 row_mask:0xf bank_mask:0xf")
E("  v_add_f32_dpp v50, v50, v50 row_ror:8 row_mask:0xf bank_mask:0xf")
E("  v_add_f32_dpp v54, v54, v54 quad_perm:[2,3,0,1] row_mask:0xf bank_mask:0xf")
E("  v_add_f32_dpp v96, v96, v96 row_ror:8 row_mask:0xf bank_mask:0xf")
E("  v_add_f32_dpp v98, v98, v98 row_ror:8 row_mask:0xf bank_mask:0xf")
E("  v_add_f32_dpp v54, v54, v54 row_half_mirror row_mask:0xf bank_mask:0xf")
E("  v_permlane16_swap_b32 v48, v50")
E("  s_nop 0")
E("  v_permlane16_swap_b32 v96, v98")
E("  v_add_f32_dpp v54, v54, v54 row_mirror row_mask:0xf bank_mask:0xf")
E("  v_add_f32 v48, v48, v50")
E("  v_mov_b32 v53, v54")
E("  v_add_f32 v96, v96, v98")
E("  s_nop 1")
E("  v_permlane16_swap_b32 v54, v53")
E("  v_permlane32_swap_b32 v48, v96")
E("  s_nop 1")
E("  v_add_f32 v54, v54, v53         ; L")
E("  v_add_f32 v48, v48, v96")
E("  v_rcp_f32 v54, v54")
E("  s_nop 0")
E("  v_mul_f32 v48, v48, v54")
E("  s_mov_b64 exec, s[60:61]")
E("  ds_write_b32 v13, v48")
E("  s_mov_b64 exec, -1")
E("  s_waitcnt lgkmcnt(0)")
E("  s_barrier                        ; BarO")
for wv in range(4):
    E(f"  ds_read_b128 v[{40+4*wv}:{43+4*wv}], v4 offset:{LDS_O3+wv*128}")
E("  s_waitcnt lgkmcnt(0)")
for j in range(4):
    E(f"  v_add_f32 v{40+j}, v{40+j}, v{44+j}")
    E(f"  v_add_f32 v{48+j}, v{48+j}, v{52+j}")
for j in range(4):
    E(f"  v_add_f32 v{40+j}, v{40+j}, v{48+j}")
E("  v_cvt_pk_bf16_f32 v44, v40, v41")
E("  v_cvt_pk_bf16_f32 v45, v42, v43")
E(f"  v_lshlrev_b32 v{XB}, 16, v44")
E(f"  v_and_b32 v{XB+1}, 0xffff0000, v44")
E(f"  v_lshlrev_b32 v{XB+2}, 16, v45")
E(f"  v_and_b32 v{XB+3}, 0xffff0000, v45")
fma_rows(WO, XB, ACC, 58)
E("  s_nop 1")
for k in range(8):
    E(f"  v_add_f32_dpp v{ACC+k}, v{ACC+k}, v{ACC+k} row_ror:8 row_mask:0xf bank_mask:0xf")
E("  s_nop 1")
for a_, b_ in ((0, 2), (1, 3), (4, 6), (5, 7)):
    E(f"  v_permlane16_swap_b32 v{ACC+a_}, v{ACC+b_}")
E("  s_nop 1")
for a_, b_ in ((0, 2), (1, 3), (4, 6), (5, 7)):
    E(f"  v_add_f32 v{ACC+a_}, v{ACC+a_}, v{ACC+b_}")
E("  s_nop 1")
E(f"  v_permlane32_swap_b32 v{ACC}, v{ACC+4}")
E(f"  v_permlane32_swap_b32 v{ACC+1}, v{ACC+5}")
E("  s_nop 1")
E(f"  v_add_f32 v{ACC}, v{ACC}, v{ACC+4}")
E(f"  v_add_f32 v{ACC+2}, v{ACC+1}, v{ACC+5}")
E(f"  v_mov_b32 v{ACC+1}, s{S_TAG}")
E(f"  v_mov_b32 v{ACC+3}, s{S_TAG}")
E("  s_mov_b64 exec, s[60:61]")
E(f"  buffer_store_dwordx4 v[{ACC}:{ACC+3}], v62, s[{SWS}:{SWS+3}], 0 offen sc1")
E("  s_mov_b64 exec, -1")
STAMP(5)
E(f"  s_cmp_lg_u32 s{S_WAVE}, 0")
E("  s_cbranch_scc1 L_end")
E("  s_lshl_b32 s55, s2, 11")
E(f"  s_add_u32 s55, s55, {WS_OP}")
E("  v_lshlrev_b32 v9, 4, v0")
E("  v_add_u32 v9, s55, v9")
E(f"  s_mov_b32 s62, {POLL_MAX}")
E("L_poll3:")
for k in range(2):
    E(f"  buffer_load_dwordx4 v[{40+4*k}:{43+4*k}], v9, s[{SWS}:{SWS+3}], 0 offen offset:{k*1024} sc1")
E("  s_waitcnt vmcnt(0)")
if STAMPS:
    E(f"  s_cmp_lg_u32 s62, {POLL_MAX}")
    E("  s_cbranch_scc1 L_d2")
    STAMP(10)
    E("L_d2:")
E(f"  v_xor_b32 v56, s{S_TAG}, v41")
for r in (43, 45, 47):
    E(f"  v_xor_b32 v57, s{S_TAG}, v{r}")
    E("  v_or_b32 v56, v56, v57")
E("  v_cmp_ne_u32 vcc, 0, v56")
E("  s_cbranch_vccz L_poll3_done")
E("  s_sub_u32 s62, s62, 1")
E("  s_cmp_lg_u32 s62, 0")
E("  s_cbranch_scc1 L_poll3")
E("L_poll3_done:")
if STAMPS:
    E(f"  s_sub_u32 s91, {POLL_MAX}, s62")
STAMP(6)
E("  v_add_f32 v40, v40, v44")
E("  v_add_f32 v42, v42, v46")
E("  s_nop 1")
E("  v_permlane16_swap_b32 v40, v42")
E("  s_nop 1")
E("  v_add_f32 v40, v40, v42")
E("  v_mov_b32 v42, v40")
E("  s_nop 1")
E("  v_permlane32_swap_b32 v40, v42")
E("  s_nop 1")
E("  v_add_f32 v40, v40, v42")
E("  s_nop 1")
E("  v_add_f32_dpp v40, v40, v40 quad_perm:[1,0,3,2] row_mask:0xf bank_mask:0xf")
E("  s_nop 1")
E("  v_add_f32_dpp v40, v40, v40 quad_perm:[2,3,0,1] row_mask:0xf bank_mask:0xf")
E("  s_nop 1")
E("  v_add_f32_dpp v40, v40, v40 row_half_mirror row_mask:0xf bank_mask:0xf")
E("  s_nop 1")
E("  v_add_f32_dpp v40, v40, v40 row_mirror row_mask:0xf bank_mask:0xf")
E("  s_nop 1")
E("  v_readlane_b32 s55, v40, 16")
E("  v_mov_b32 v42, s55")
E("  v_cvt_pk_bf16_f32 v40, v40, v42")
E(f"  s_lshl_b32 s55, s{S_G}, 7")
E(f"  s_lshl_b32 s56, s{S_IDX}, 2")
E("  s_add_u32 s55, s55, s56")
E("  v_mov_b32 v9, s55")
E("  v_cmp_gt_u32 vcc, 1, v0")
E("  s_and_saveexec_b64 s[60:61], vcc")
E(f"  buffer_store_dword v40, v9, s[{SOUT}:{SOUT+3}], 0 offen")
E("  s_cmp_lg_u32 s2, 0")
E("  s_cbranch_scc1 L_a_nononce")
E(f"  v_mov_b32 v40, s{S_TAG}")
E(f"  v_mov_b32 v9, {WS_NONCE}")
E(f"  buffer_store_dword v40, v9, s[{SWS}:{SWS+3}], 0 offen sc1")
E("L_a_nononce:")
E("  s_mov_b64 exec, s[60:61]")
E("  s_branch L_end")

E("L_bwave:")
E(f"  s_sub_u32 s{S_WAVE}, s{S_WAVE}, 4   ; b")
E(f"  s_lshl_b32 s54, s{S_G}, 15")
E("  s_add_u32 s54, s54, 28672")
E(f"  s_lshl_b32 s55, s{S_IDX}, 7")
E("  s_add_u32 s54, s54, s55")
E(f"  s_lshl_b32 s55, s{S_WAVE}, 5")
E("  s_add_u32 s54, s54, s55")
E("  s_lshl_b32 s54, s54, 8")
E("  v_and_b32 v2, 15, v0")
E("  v_lshrrev_b32 v3, 4, v0")
E("  v_lshlrev_b32 v4, 8, v2")
E("  v_lshl_add_u32 v4, v3, 4, v4")
E("  v_add_u32 v4, s54, v4")
E("  s_movk_i32 s56, 0x1000")
KR = 16
def kload(n):
    tt, ks = n >> 2, n & 3
    so = "0" if tt == 0 else "s56"
    r = KR + (tt * 4 + ks) * 4
    E(f"  buffer_load_dwordx4 v[{r}:{r+3}], v4, s[{SK}:{SK+3}], {so} offen offset:{ks*64} {KVF}")
for n in range(KPRE):
    if n >= WB:
        E(f"  s_waitcnt vmcnt({WB-1})")
    kload(n)
E("  v_lshlrev_b32 v5, 1, v3")
E("  v_xor_b32 v5, v5, v2")
E("  v_lshlrev_b32 v6, 8, v3")
E("  v_lshl_add_u32 v7, v5, 4, v6")
E("  v_add_u32 v7, s54, v7")
E("  v_xor_b32 v5, 8, v5")
E("  v_lshl_add_u32 v8, v5, 4, v6")
E("  v_add_u32 v8, s54, v8")
E("  v_add_u32 v8, 0x400, v8")
E(f"  s_lshl_b32 s57, s{S_WAVE}, 13")
E("  v_and_b32 v9, 3, v0")
E("  v_lshlrev_b32 v9, 8, v9")
E("  v_lshl_add_u32 v9, v3, 4, v9")
E(f"  v_add_u32 v9, {LDS_Q}, v9")
E("  v_lshrrev_b32 v10, 2, v2")
E("  v_lshl_add_u32 v10, v3, 2, v10")
E("  v_and_b32 v11, 7, v10")
E("  v_lshlrev_b32 v11, 5, v11")
E("  v_lshl_add_u32 v11, v10, 8, v11")
E("  v_and_b32 v12, 3, v0")
E("  v_lshl_add_u32 v11, v12, 3, v11")
E("  v_add_u32 v11, s57, v11")
E("  v_and_b32 v13, 3, v0")
E("  v_lshlrev_b32 v14, 3, v13")
E("  v_lshlrev_b32 v13, 9, v13")
E("  v_lshl_add_u32 v13, v3, 4, v13")
E(f"  s_lshl_b32 s55, s{S_WAVE}, 11")
E(f"  s_add_u32 s55, s55, {LDS_OPART}")
E("  v_add_u32 v13, s55, v13")
E(f"  s_lshl_b32 s55, s{S_WAVE}, 5")
E(f"  s_add_u32 s55, s55, {LDS_MLP}")
E("  v_add_u32 v14, s55, v14")
E(f"  s_lshl_b32 s55, s{S_WAVE}, 9")
E(f"  s_add_u32 s55, s55, {LDS_OPART}")
E("  v_lshlrev_b32 v15, 3, v0")
E("  v_add_u32 v15, s55, v15")
E(f"  s_lshl_b32 s55, s{S_G}, 2")
E(f"  s_add_u32 s55, s55, s{S_WAVE}")
E("  s_lshl_b32 s55, s55, 5")
E(f"  s_add_u32 s55, s55, s{S_IDX}     ; (g*4+b)*32 + split")
E("  s_lshl_b32 s59, s55, 10")
E(f"  s_add_u32 s59, s59, {WS_AP}")
E("  v_lshlrev_b32 v116, 4, v0")
E("  v_add_u32 v116, s59, v116")
if MLREP:
    E(f"  s_lshl_b32 s59, s{S_G}, 2")
    E(f"  s_add_u32 s59, s59, s{S_WAVE}")
    E("  s_lshl_b32 s59, s59, 12")
    E(f"  s_lshl_b32 s62, s{S_IDX}, 4")
    E("  s_add_u32 s59, s59, s62")
    E(f"  s_add_u32 s59, s59, {WS_ML}")
    E("  v_lshlrev_b32 v117, 9, v0")
    E("  v_add_u32 v117, s59, v117")
else:
    E("  s_lshl_b32 s59, s55, 4")
    E(f"  s_add_u32 s59, s59, {WS_ML}")
    E("  v_mov_b32 v117, s59")
E(f"  s_lshl_b32 s55, s{S_WAVE}, 3")
E(f"  s_add_u32 s55, s55, {LDS_MLP}")
E("  v_mov_b32 v118, s55")
E("  v_cmp_gt_u32 s[60:61], 4, v2")
E("  s_barrier                        ; Bar1")
E("  s_barrier                        ; Bar2")
STAMP(7)
for n in range(KPRE, 8):
    if n >= WB:
        E(f"  s_waitcnt vmcnt({WB-1})")
    kload(n)
STAMP(8)
E("  s_mov_b32 s58, 0x3db504f3       ; 128^-0.5 (f32)")
E("  s_mov_b32 s59, 0x3fb8aa3b       ; log2(e)")
E("  s_waitcnt vmcnt(0) lgkmcnt(0)")
E(f"  s_add_u32 s{S_TAG}, s{S_TAG}, 1")
STAMP(1)
E("  s_barrier                        ; BarQ")
STAMP(2)
QF = 48
for ks in range(4):
    E(f"  ds_read_b128 v[{QF+4*ks}:{QF+4*ks+3}], v9 offset:{ks*64}")
SC = 64
for ks in range(4):
    E(f"  s_waitcnt lgkmcnt({3-ks})")
    for tt in range(2):
        r = KR + (tt * 4 + ks) * 4
        c = "0" if ks == 0 else f"v[{SC+4*tt}:{SC+4*tt+3}]"
        E(f"  v_mfma_f32_16x16x32_bf16 v[{SC+4*tt}:{SC+4*tt+3}], v[{r}:{r+3}], v[{QF+4*ks}:{QF+4*ks+3}], {c}")
E("  s_nop 7")
E("  s_nop 3")
for j in range(4):
    E(f"  v_cvt_pk_bf16_f32 v{72+j}, v{SC+2*j}, v{SC+2*j+1}")
for j in range(4):
    E(f"  v_lshlrev_b32 v{SC+2*j}, 16, v{72+j}")
    E(f"  v_and_b32 v{SC+2*j+1}, 0xffff0000, v{72+j}")
for j in range(8):
    E(f"  v_mul_f32 v{SC+j}, s58, v{SC+j}")
for j in range(4):
    E(f"  v_cvt_pk_bf16_f32 v{72+j}, v{SC+2*j}, v{SC+2*j+1}")
for j in range(4):
    E(f"  v_lshlrev_b32 v{SC+2*j}, 16, v{72+j}")
    E(f"  v_and_b32 v{SC+2*j+1}, 0xffff0000, v{72+j}")
for j in range(8):
    E(f"  v_mul_f32 v{SC+j}, s59, v{SC+j}")
E(f"  v_max3_f32 v76, v{SC}, v{SC+1}, v{SC+2}")
E(f"  v_max3_f32 v77, v{SC+3}, v{SC+4}, v{SC+5}")
E(f"  v_max3_f32 v76, v76, v{SC+6}, v{SC+7}")
E("  v_max_f32 v76, v76, v77")
E("  v_mov_b32 v77, v76")
E("  s_nop 1")
E("  v_permlane16_swap_b32 v76, v77")
E("  s_nop 1")
E("  v_max_f32 v76, v76, v77")
E("  v_mov_b32 v77, v76")
E("  s_nop 1")
E("  v_permlane32_swap_b32 v76, v77")
E("  s_nop 1")
E("  v_max_f32 v76, v76, v77         ; m_w")
for j in range(8):
    E(f"  v_sub_f32 v{SC+j}, v{SC+j}, v76")
for j in range(8):
    E(f"  v_exp_f32 v{SC+j}, v{SC+j}")
E("  s_nop 0")
for j in range(4):
    E(f"  v_cvt_pk_bf16_f32 v{72+j}, v{SC+2*j}, v{SC+2*j+1}")
E(f"  v_add_f32 v77, v{SC}, v{SC+1}")
E(f"  v_add_f32 v78, v{SC+2}, v{SC+3}")
E(f"  v_add_f32 v79, v{SC+4}, v{SC+5}")
E(f"  v_add_f32 v80, v{SC+6}, v{SC+7}")
E("  v_add_f32 v77, v77, v78")
E("  v_add_f32 v79, v79, v80")
E("  v_add_f32 v77, v77, v79")
E("  v_mov_b32 v78, v77")
E("  s_nop 1")
E("  v_permlane16_swap_b32 v77, v78")
E("  s_nop 1")
E("  v_add_f32 v77, v77, v78")
E("  v_mov_b32 v78, v77")
E("  s_nop 1")
E("  v_permlane32_swap_b32 v77, v78")
E("  s_nop 1")
E("  v_add_f32 v77, v77, v78         ; l_w")
STAMP(3)
E("  s_barrier                        ; BarV")
STAMP(4)
VF = 84
for t in range(8):
    E(f"  v_xor_b32 v12, {t*32}, v11")
    E(f"  ds_read_b64_tr_b16 v[{VF+4*t}:{VF+4*t+1}], v12")
    E(f"  ds_read_b64_tr_b16 v[{VF+4*t+2}:{VF+4*t+3}], v12 offset:4096")
OA = 16
for t in range(8):
    E(f"  s_waitcnt lgkmcnt({14-2*t})")
    E(f"  v_mfma_f32_16x16x32_bf16 v[{OA+4*t}:{OA+4*t+3}], v[{VF+4*t}:{VF+4*t+3}], v[72:75], 0")
E("  s_mov_b64 exec, s[60:61]")
E("  ds_write_b64 v14, v[76:77]")
E("  s_nop 4")
for t in range(8):
    E(f"  ds_write_b128 v13, v[{OA+4*t}:{OA+4*t+3}] offset:{64*t}")
E("  s_mov_b64 exec, -1")
E("  s_waitcnt lgkmcnt(0)")
E("  s_barrier                        ; BarC")
STAMP(5)
for wv in range(4):
    E(f"  ds_read_b64 v[{48+2*wv}:{49+2*wv}], v118 offset:{wv*32}")
for wv in range(4):
    E(f"  ds_read_b64 v[{56+2*wv}:{57+2*wv}], v15 offset:{wv*2048}")
E("  s_waitcnt lgkmcnt(4)")
E("  v_max3_f32 v32, v48, v50, v52")
E("  v_max_f32 v32, v32, v54         ; M")
for wv in range(4):
    E(f"  v_sub_f32 v{33+wv}, v{48+2*wv}, v32")
for wv in range(4):
    E(f"  v_exp_f32 v{33+wv}, v{33+wv}")
E("  s_nop 0")
E("  v_mul_f32 v38, v33, v49")
for wv in range(1, 4):
    E(f"  v_fmac_f32 v38, v{33+wv}, v{49+2*wv}")
E("  s_waitcnt lgkmcnt(0)")
E("  v_mul_f32 v40, v33, v56")
E("  v_mul_f32 v42, v33, v57")
for wv in range(1, 4):
    E(f"  v_fmac_f32 v40, v{33+wv}, v{56+2*wv}")
    E(f"  v_fmac_f32 v42, v{33+wv}, v{57+2*wv}")
E(f"  v_mov_b32 v41, s{S_TAG}")
E(f"  v_mov_b32 v43, s{S_TAG}")
E(f"  buffer_store_dwordx4 v[40:43], v116, s[{SWS}:{SWS+3}], 0 offen sc1")
E("  v_mov_b32 v44, v32")
E(f"  v_mov_b32 v45, s{S_TAG}")
E("  v_mov_b32 v46, v38")
E(f"  v_mov_b32 v47, s{S_TAG}")
E(f"  v_cmp_gt_u32 vcc, {8 if MLREP else 1}, v0")
E("  s_and_saveexec_b64 s[60:61], vcc")
E(f"  buffer_store_dwordx4 v[44:47], v117, s[{SWS}:{SWS+3}], 0 offen sc1")
E("  s_mov_b64 exec, s[60:61]")
E("  s_branch L_end")
E("L_cwave:")
E(f"  s_sub_u32 s{S_WAVE}, s{S_WAVE}, 8   ; c")
E(f"  s_lshl_b32 s54, s{S_G}, 15")
E("  s_add_u32 s54, s54, 28672")
E(f"  s_lshl_b32 s55, s{S_IDX}, 7")
E("  s_add_u32 s54, s54, s55")
E(f"  s_lshl_b32 s55, s{S_WAVE}, 5")
E("  s_add_u32 s54, s54, s55")
E("  s_lshl_b32 s54, s54, 8")
E("  v_and_b32 v2, 15, v0")
E("  v_lshrrev_b32 v3, 4, v0")
E("  v_lshlrev_b32 v5, 1, v3")
E("  v_xor_b32 v5, v5, v2")
E("  v_lshlrev_b32 v6, 8, v3")
E("  v_lshl_add_u32 v7, v5, 4, v6")
E("  v_add_u32 v7, s54, v7")
E("  v_xor_b32 v5, 8, v5")
E("  v_lshl_add_u32 v8, v5, 4, v6")
E("  v_add_u32 v8, s54, v8")
E("  v_add_u32 v8, 0x400, v8")
E(f"  s_lshl_b32 s57, s{S_WAVE}, 13")
for i in range(8):
    if i == VPRE:
        E("  s_barrier                        ; Bar1")
        E("  s_barrier                        ; Bar2")
        STAMP(7)
    if i >= WC:
        E(f"  s_waitcnt vmcnt({WC-1})")
    E(f"  s_add_u32 m0, s57, {i*1024}")
    E(f"  s_movk_i32 s58, {(i>>1)*2048}")
    E(f"  buffer_load_dwordx4 v{7 + (i&1)}, s[{SV}:{SV+3}], s58 offen {KVF} lds")
if VPRE >= 8:
    E("  s_barrier                        ; Bar1")
    E("  s_barrier                        ; Bar2")
STAMP(8)
E("  s_barrier                        ; BarQ")
E("  s_waitcnt vmcnt(0)")
STAMP(1)
E("  s_barrier                        ; BarV")

E("L_end:")
if STAMPS:
    STAMP(15)
    E("  s_mov_b64 exec, -1")
    E("  v_mov_b32 v40, 0")
    for i in range(16):
        E(f"  v_writelane_b32 v40, s{80+i}, {i}")
    E("  s_lshl_b32 s55, s2, 3")
    E("  s_and_b32 s56, s34, 7")
    E("  s_add_u32 s55, s55, s56")
    E("  s_lshr_b32 s56, s34, 3")
    E("  s_lshl_b32 s56, s56, 11")
    E("  s_add_u32 s55, s55, s56")
    E("  s_lshl_b32 s55, s55, 6")
    E(f"  s_add_u32 s55, s55, {WS_STAMP}")
    E("  v_lshlrev_b32 v9, 2, v0")
    E("  v_add_u32 v9, s55, v9")
    E("  v_cmp_gt_u32 vcc, 16, v0")
    E("  s_and_saveexec_b64 s[60:61], vcc")
    E(f"  buffer_store_dword v40, v9, s[{SWS}:{SWS+3}], 0 offen")
    E("  s_mov_b64 exec, s[60:61]")
E("L_end2:")
E("  s_endpgm")
E('.section .rodata,"a"')
E(".p2align 6")
E(".amdhsa_kernel standalone__sliding_block_cached__decode_kernel")
E("  .amdhsa_next_free_vgpr 128")
E("  .amdhsa_next_free_sgpr 100")
E("  .amdhsa_accum_offset 128")
E("  .amdhsa_group_segment_fixed_size 0")
E("  .amdhsa_kernarg_size 64")
E("  .amdhsa_user_sgpr_count 2")
E("  .amdhsa_user_sgpr_kernarg_segment_ptr 1")
E("  .amdhsa_system_sgpr_workgroup_id_x 1")
E(".end_amdhsa_kernel")
open(OUT, "w").write("\n".join(L) + "\n")
print("wrote", OUT, len(L), "lines")
```

```python
import sys, os

OUT = sys.argv[1] if len(sys.argv) > 1 else "standalone__sliding_block_cached__decode.s"
L = []
def E(s=""):
    L.append(s)
STAMPS = int(os.environ.get("STAMPS", "0"))
DBG = int(os.environ.get("DBG", "0"))
KPRE = int(os.environ.get("KPRE", "4"))
VPRE = int(os.environ.get("VPRE", "0"))
WB = int(os.environ.get("WB", "8"))
WC = int(os.environ.get("WC", "8"))
KVF = os.environ.get("KVF", "nt")
WQF = os.environ.get("WQF", "nt")
WOF = os.environ.get("WOF", "nt")
WOLATE = int(os.environ.get("WOLATE", "0"))
QSLEEP = int(os.environ.get("QSLEEP", "12"))
MLREP = int(os.environ.get("MLREP", "0"))
ROT3 = int(os.environ.get("ROT3", "0"))
def STAMP(i):
    if STAMPS:
        E("  s_memrealtime s[78:79]")
        E("  s_waitcnt lgkmcnt(0)")
        E(f"  s_mov_b32 s{80+i}, s78")

WS_NONCE = 0
WS_QP = 0x10000
WS_ML = 0x30000 if not MLREP else 0x240000
WS_AP = 0x40000
WS_OP = 0x140000
WS_SIZE = 0x260000 if not STAMPS else 0x400000
WS_STAMP = 0x300000

LDS_V = 0
LDS_Q = 32768
LDS_OPART = 33792
LDS_MLP = 41984
LDS_P1 = 42240
LDS_O3 = 42496
LDS_SIZE = 43008

POLL_MAX = 200000

hdr = open("standalone__sliding_block_cached__decode.s.ref").read().split("\n")
for ln in hdr:
    if ln.startswith("; @launch"):
        break
    E(ln)
E(f"; @launch grid=(256,1,1) block=(768,1,1) lds={LDS_SIZE}")
E('.amdgcn_target "amdgcn-amd-amdhsa--gfx950"')
E(".text")
E(".globl standalone__sliding_block_cached__decode_kernel")
E(".p2align 8")
E(".type standalone__sliding_block_cached__decode_kernel,@function")
E("standalone__sliding_block_cached__decode_kernel:")

SX, SK, SV, SWQ, SWO, SOUT, SWS = 4, 8, 12, 16, 20, 24, 28
S_TAG, S_WAVE = 32, 33
S_G, S_IDX = 52, 53
def srd(base, ptr_lo, nbytes):
    E(f"  s_mov_b32 s{base}, s{ptr_lo}")
    E(f"  s_and_b32 s{base+1}, s{ptr_lo+1}, 0xffff")
    E(f"  s_mov_b32 s{base+2}, {nbytes}")
    E(f"  s_mov_b32 s{base+3}, 0x00020000")

E("  s_cmp_ge_u32 s2, 256")
E("  s_cbranch_scc1 L_end2")
E("  s_load_dwordx16 s[36:51], s[0:1], 0")
E("  v_lshrrev_b32 v1, 6, v0")
E("  v_and_b32 v0, 63, v0            ; lane")
E(f"  s_and_b32 s{S_G}, s2, 7")
E(f"  s_lshr_b32 s{S_IDX}, s2, 3")
E(f"  v_readfirstlane_b32 s{S_WAVE}, v1")
if STAMPS:
    for i in range(16):
        E(f"  s_mov_b32 s{80+i}, 0")
    E(f"  s_mov_b32 s34, s{S_WAVE}")
STAMP(0)
if DBG:
    E("  s_memrealtime s[76:77]")
E("  s_waitcnt lgkmcnt(0)")
E(f"  s_load_dword s{S_TAG}, s[50:51], {WS_NONCE}")
srd(SX, 36, 1024)
srd(SK, 38, 67108864)
srd(SV, 40, 67108864)
srd(SWQ, 42, 4194304)
srd(SWO, 44, 4194304)
srd(SOUT, 46, 1024)
srd(SWS, 50, WS_SIZE)
if DBG:
    srd(68, 48, 256)
E(f"  s_cmp_ge_u32 s{S_WAVE}, 8")
E("  s_cbranch_scc1 L_cwave")
E(f"  s_cmp_ge_u32 s{S_WAVE}, 4")
E("  s_cbranch_scc1 L_bwave")

def fma_rows(wbase, xb, acc, tmp):
    for i in range(4):
        for k in range(4):
            w = wbase + 4 * i + k
            E(f"  v_lshlrev_b32 v{tmp}, 16, v{w}")
            E(f"  v_and_b32 v{tmp+1}, 0xffff0000, v{w}")
            if i == 0:
                E(f"  v_mul_f32 v{acc+2*k}, v{xb+i}, v{tmp}")
                E(f"  v_mul_f32 v{acc+2*k+1}, v{xb+i}, v{tmp+1}")
            else:
                E(f"  v_fmac_f32 v{acc+2*k}, v{xb+i}, v{tmp}")
                E(f"  v_fmac_f32 v{acc+2*k+1}, v{xb+i}, v{tmp+1}")

E("L_awave:")
E("  s_setprio 3")
E("  v_lshrrev_b32 v2, 1, v0         ; j")
E("  v_and_b32 v3, 1, v0             ; hf")
E(f"  s_add_u32 s55, s{S_G}, 1")
E("  s_and_b32 s55, s55, 7")
E("  s_lshl_b32 s55, s55, 9")
E(f"  s_lshl_b32 s56, s{S_IDX}, 4")
E("  s_add_u32 s55, s55, s56")
E(f"  s_lshl_b32 s56, s{S_WAVE}, 7")
E("  v_lshlrev_b32 v4, 2, v2")
E("  v_add_u32 v4, s56, v4           ; row0")
E("  v_lshlrev_b32 v5, 1, v4")
E(f"  buffer_load_dwordx2 v[6:7], v5, s[{SX}:{SX+3}], 0 offen")
E("  v_lshlrev_b32 v5, 13, v4")
E("  v_lshl_add_u32 v5, v3, 4, v5")
E("  s_lshl_b32 s57, s55, 1")
E("  v_add_u32 v5, s57, v5")
E("  s_movk_i32 s56, 0x2000")
E("  s_movk_i32 s57, 0x4000")
E("  s_movk_i32 s58, 0x6000")
WQ = 16
E(f"  buffer_load_dwordx4 v[{WQ}:{WQ+3}], v5, s[{SWQ}:{SWQ+3}], 0 offen {WQF}")
E(f"  buffer_load_dwordx4 v[{WQ+4}:{WQ+7}], v5, s[{SWQ}:{SWQ+3}], s56 offen {WQF}")
E(f"  buffer_load_dwordx4 v[{WQ+8}:{WQ+11}], v5, s[{SWQ}:{SWQ+3}], s57 offen {WQF}")
E(f"  buffer_load_dwordx4 v[{WQ+12}:{WQ+15}], v5, s[{SWQ}:{SWQ+3}], s58 offen {WQF}")
E("  v_lshrrev_b32 v8, 4, v0         ; R")
E("  v_lshl_add_u32 v9, v3, 3, v8    ; 8hf + R")
E("  v_lshlrev_b32 v9, 2, v9")
E(f"  s_lshl_b32 s56, s{S_WAVE}, 6")
E(f"  s_add_u32 s56, s56, {LDS_P1}")
E("  v_add_u32 v9, s56, v9")
E("  v_and_b32 v14, 7, v0")
E("  v_lshlrev_b32 v14, 3, v14")
E("  s_lshl_b32 s56, s55, 2")
E(f"  s_add_u32 s56, s56, {WS_QP}")
E("  v_add_u32 v15, s56, v14")
E("  v_and_b32 v12, 14, v0")
E("  v_cmp_eq_u32 s[60:61], 0, v12")
E("  v_cmp_gt_u32 s[74:75], 8, v0")
E(f"  s_lshr_b32 s55, s{S_G}, 1")
E("  s_add_u32 s55, s55, 1")
E("  s_and_b32 s55, s55, 3")
E("  s_lshl_b32 s55, s55, 3")
E(f"  s_lshr_b32 s54, s{S_IDX}, 2")
E("  s_add_u32 s54, s54, s55         ; h3")
E(f"  s_and_b32 s63, s{S_IDX}, 3       ; quarter")
E(f"  s_and_b32 s64, s{S_G}, 1")
E("  s_xor_b32 s64, s64, 1")
E(f"  s_lshl_b32 s65, s{S_WAVE}, 1")
E("  s_add_u32 s64, s64, s65")
E(f"  s_lshl_b32 s55, s{S_G}, 11")
E(f"  s_add_u32 s55, s55, {WS_QP}")
E("  v_lshlrev_b32 v60, 4, v0")
E("  v_add_u32 v60, s55, v60")
E("  v_lshlrev_b32 v61, 3, v0")
E(f"  v_add_u32 v61, {LDS_Q}, v61")
E("  s_waitcnt vmcnt(0) lgkmcnt(0)")
E(f"  s_add_u32 s{S_TAG}, s{S_TAG}, 1")
STAMP(1)
XB = 10
E(f"  v_lshlrev_b32 v{XB}, 16, v6")
E(f"  v_and_b32 v{XB+1}, 0xffff0000, v6")
E(f"  v_lshlrev_b32 v{XB+2}, 16, v7")
E(f"  v_and_b32 v{XB+3}, 0xffff0000, v7")
ACC = 32
fma_rows(WQ, XB, ACC, 58)
E("  s_nop 1")
for k in range(8):
    E(f"  v_add_f32_dpp v{ACC+k}, v{ACC+k}, v{ACC+k} quad_perm:[2,3,0,1] row_mask:0xf bank_mask:0xf")
for k in range(8):
    E(f"  v_add_f32_dpp v{ACC+k}, v{ACC+k}, v{ACC+k} row_ror:4 row_mask:0xf bank_mask:0xf")
for k in range(8):
    E(f"  v_add_f32_dpp v{ACC+k}, v{ACC+k}, v{ACC+k} row_ror:8 row_mask:0xf bank_mask:0xf")
E("  s_nop 1")
for k in range(4):
    E(f"  v_permlane16_swap_b32 v{ACC+2*k}, v{ACC+2*k+1}")
E("  s_nop 1")
for k in range(4):
    E(f"  v_add_f32 v{ACC+2*k}, v{ACC+2*k}, v{ACC+2*k+1}")
E("  s_nop 1")
E(f"  v_permlane32_swap_b32 v{ACC}, v{ACC+2}")
E(f"  v_permlane32_swap_b32 v{ACC+4}, v{ACC+6}")
E("  s_nop 1")
E(f"  v_add_f32 v{ACC}, v{ACC}, v{ACC+2}")
E(f"  v_add_f32 v{ACC+4}, v{ACC+4}, v{ACC+6}")
E("  s_mov_b64 exec, s[60:61]")
E(f"  ds_write2_b32 v9, v{ACC}, v{ACC+4} offset0:0 offset1:4")
E("  s_mov_b64 exec, -1")
E("  v_and_b32 v3, 7, v0             ; c")
E("  v_lshrrev_b32 v2, 3, v0         ; rgrp")
E("  s_lshl_b32 s55, s54, 7")
E("  s_lshl_b32 s56, s63, 5")
E("  s_add_u32 s55, s55, s56")
E("  v_lshlrev_b32 v4, 2, v2")
E("  v_add_u32 v4, s55, v4           ; row0")
E("  v_lshlrev_b32 v5, 10, v4")
E("  v_lshl_add_u32 v5, v3, 4, v5")
E("  s_lshl_b32 s56, s64, 7")
E("  v_add_u32 v5, s56, v5")
E("  s_waitcnt lgkmcnt(0)")
E("  s_barrier                        ; Bar1")
E(f"  s_cmp_lg_u32 s{S_WAVE}, 0")
E("  s_cbranch_scc1 L_a_nopub")
for wv in range(4):
    E(f"  ds_read_b64 v[{40+2*wv}:{41+2*wv}], v14 offset:{LDS_P1+wv*64}")
E("  s_waitcnt lgkmcnt(0)")
E("  v_add_f32 v40, v40, v42")
E("  v_add_f32 v41, v41, v43")
E("  v_add_f32 v44, v44, v46")
E("  v_add_f32 v45, v45, v47")
E("  v_add_f32 v40, v40, v44")
E("  v_add_f32 v41, v41, v45")
E("  v_cvt_pk_bf16_f32 v40, v40, v41")
E(f"  v_mov_b32 v41, s{S_TAG}")
E("  s_mov_b64 exec, s[74:75]")
E(f"  buffer_store_dwordx2 v[40:41], v15, s[{SWS}:{SWS+3}], 0 offen sc1")
E("  s_mov_b64 exec, -1")
E("L_a_nopub:")
E("  s_barrier")
STAMP(2)
E(f"  s_cmp_lg_u32 s{S_WAVE}, 1")
E("  s_cbranch_scc1 L_a_noq")
def qissue(i):
    b = 64 + 8 * i
    E(f"  buffer_load_dwordx4 v[{b}:{b+3}], v60, s[{SWS}:{SWS+3}], 0 offen sc1")
    E(f"  buffer_load_dwordx4 v[{b+4}:{b+7}], v60, s[{SWS}:{SWS+3}], 0 offen offset:1024 sc1")
for i in range(4):
    E(f"  s_sleep {QSLEEP}")
    qissue(i)
E(f"  s_mov_b32 s62, {POLL_MAX}")
E("L_poll1:")
for i in range(4):
    b = 64 + 8 * i
    E("  s_waitcnt vmcnt(6)")
    E(f"  v_xor_b32 v56, s{S_TAG}, v{b+1}")
    for r in (b + 3, b + 5, b + 7):
        E(f"  v_xor_b32 v57, s{S_TAG}, v{r}")
        E("  v_or_b32 v56, v56, v57")
    E("  v_cmp_ne_u32 vcc, 0, v56")
    E(f"  s_cbranch_vccz L_q_ok{i}")
    qissue(i)
E("  s_sub_u32 s62, s62, 1")
E("  s_cmp_lg_u32 s62, 0")
E("  s_cbranch_scc1 L_poll1")
for i in range(4):
    b = 64 + 8 * i
    E(f"L_q_ok{i}:")
    E(f"  v_mov_b32 v{b+1}, v{b+2}")
    E(f"  v_mov_b32 v{b+5}, v{b+6}")
    E(f"  ds_write_b64 v61, v[{b}:{b+1}]")
    E(f"  ds_write_b64 v61, v[{b+4}:{b+5}] offset:512")
    if i < 3:
        E("  s_branch L_q_done")
E("L_q_done:")
STAMP(7)
E("  s_waitcnt lgkmcnt(0)")
E("L_a_noq:")
if MLREP:
    E("  s_lshl_b32 s55, s54, 3")
    E("  s_add_u32 s55, s55, s63")
    E("  s_lshl_b32 s55, s55, 9")
else:
    E("  s_lshl_b32 s55, s54, 9")
E(f"  s_add_u32 s55, s55, {WS_ML}")
E("  v_and_b32 v9, 31, v0")
E("  v_lshlrev_b32 v9, 4, v9")
E("  v_add_u32 v9, s55, v9")
E("  v_lshrrev_b32 v13, 3, v0")
E(f"  s_lshl_b32 s56, s{S_WAVE}, 7")
E("  s_add_u32 s55, s55, s56")
E("  v_lshlrev_b32 v12, 4, v13")
E("  v_add_u32 v12, s55, v12")
E("  s_lshl_b32 s55, s54, 15")
E(f"  s_lshl_b32 s56, s{S_WAVE}, 13")
E("  s_add_u32 s55, s55, s56")
E("  s_lshl_b32 s56, s63, 8")
E("  s_add_u32 s55, s55, s56")
E(f"  s_add_u32 s55, s55, {WS_AP}")
E("  v_lshlrev_b32 v15, 10, v13")
E("  v_lshl_add_u32 v15, v14, 2, v15  ; + (l&7)*32")
E("  v_add_u32 v15, s55, v15")
E("  v_lshlrev_b32 v13, 2, v8")
E("  v_lshl_add_u32 v13, v14, 1, v13")
E(f"  s_lshl_b32 s56, s{S_WAVE}, 7")
E(f"  s_add_u32 s56, s56, {LDS_O3}")
E("  v_add_u32 v13, s56, v13")
E("  v_and_b32 v4, 8, v0")
E("  v_cmp_eq_u32 s[60:61], 0, v4")
E("  v_lshlrev_b32 v4, 4, v2")
E("  v_lshl_add_u32 v62, v3, 2, v8")
E("  v_lshlrev_b32 v62, 14, v62")
E("  s_lshl_b32 s55, s64, 11")
E(f"  s_lshr_b32 s56, s{S_G}, 1")
E("  s_lshl_b32 s56, s56, 5")
E(f"  s_add_u32 s56, s56, s{S_IDX}")
E("  s_lshl_b32 s56, s56, 4")
E("  s_add_u32 s55, s55, s56")
E(f"  s_add_u32 s55, s55, {WS_OP}")
E("  v_add_u32 v62, s55, v62")
E("  s_barrier                        ; BarQ")
BARV_A = True
if WOLATE:
    E("  s_barrier                        ; BarC")
WO = 16
E(f"  buffer_load_dwordx4 v[{WO}:{WO+3}], v5, s[{SWO}:{SWO+3}], 0 offen {WOF}")
E(f"  buffer_load_dwordx4 v[{WO+4}:{WO+7}], v5, s[{SWO}:{SWO+3}], 0 offen offset:1024 {WOF}")
E(f"  buffer_load_dwordx4 v[{WO+8}:{WO+11}], v5, s[{SWO}:{SWO+3}], 0 offen offset:2048 {WOF}")
E(f"  buffer_load_dwordx4 v[{WO+12}:{WO+15}], v5, s[{SWO}:{SWO+3}], 0 offen offset:3072 {WOF}")
E("  s_barrier                        ; BarV")
E("  s_barrier                        ; BarC")
STAMP(3)
E(f"  s_mov_b32 s62, {POLL_MAX}")
E("L_poll2:")
E(f"  buffer_load_dwordx4 v[40:43], v9, s[{SWS}:{SWS+3}], 0 offen sc1")
E(f"  buffer_load_dwordx4 v[44:47], v12, s[{SWS}:{SWS+3}], 0 offen sc1")
E(f"  buffer_load_dwordx4 v[48:51], v15, s[{SWS}:{SWS+3}], 0 offen sc1")
E(f"  buffer_load_dwordx4 v[96:99], v15, s[{SWS}:{SWS+3}], 0 offen offset:16 sc1")
E("  s_waitcnt vmcnt(0)")
if STAMPS:
    E(f"  s_cmp_lg_u32 s62, {POLL_MAX}")
    E("  s_cbranch_scc1 L_d1")
    STAMP(8)
    E("L_d1:")
E(f"  v_xor_b32 v56, s{S_TAG}, v41")
for r in (43, 45, 47, 49, 51, 97, 99):
    E(f"  v_xor_b32 v57, s{S_TAG}, v{r}")
    E("  v_or_b32 v56, v56, v57")
E("  v_cmp_ne_u32 vcc, 0, v56")
E("  s_cbranch_vccz L_poll2_done")
E("  s_sub_u32 s62, s62, 1")
E("  s_cmp_lg_u32 s62, 0")
E("  s_cbranch_scc1 L_poll2")
E("L_poll2_done:")
if STAMPS:
    E(f"  s_sub_u32 s89, {POLL_MAX}, s62")
STAMP(4)
E("  v_mov_b32 v52, v40")
E("  s_nop 1")
E("  v_max_f32_dpp v52, v52, v52 quad_perm:[1,0,3,2] row_mask:0xf bank_mask:0xf")
E("  s_nop 1")
E("  v_max_f32_dpp v52, v52, v52 quad_perm:[2,3,0,1] row_mask:0xf bank_mask:0xf")
E("  s_nop 1")
E("  v_max_f32_dpp v52, v52, v52 row_half_mirror row_mask:0xf bank_mask:0xf")
E("  s_nop 1")
E("  v_max_f32_dpp v52, v52, v52 row_mirror row_mask:0xf bank_mask:0xf")
E("  v_mov_b32 v53, v52")
E("  s_nop 1")
E("  v_permlane16_swap_b32 v52, v53")
E("  s_nop 1")
E("  v_max_f32 v52, v52, v53         ; M")
E("  v_sub_f32 v54, v40, v52")
E("  v_sub_f32 v55, v44, v52")
E("  v_exp_f32 v54, v54")
E("  v_exp_f32 v55, v55")
E("  s_nop 0")
E("  v_mul_f32 v54, v54, v42")
E("  v_mul_f32 v48, v55, v48")
E("  v_mul_f32 v50, v55, v50")
E("  v_mul_f32 v96, v55, v96")
E("  v_mul_f32 v98, v55, v98")
E("  v_add_f32_dpp v54, v54, v54 quad_perm:[1,0,3,2] row_mask:0xf bank_mask:0xf")
E("  v_add_f32_dpp v48, v48, v48 row_ror:8 row_mask:0xf bank_mask:0xf")
E("  v_add_f32_dpp v50, v50, v50 row_ror:8 row_mask:0xf bank_mask:0xf")
E("  v_add_f32_dpp v54, v54, v54 quad_perm:[2,3,0,1] row_mask:0xf bank_mask:0xf")
E("  v_add_f32_dpp v96, v96, v96 row_ror:8 row_mask:0xf bank_mask:0xf")
E("  v_add_f32_dpp v98, v98, v98 row_ror:8 row_mask:0xf bank_mask:0xf")
E("  v_add_f32_dpp v54, v54, v54 row_half_mirror row_mask:0xf bank_mask:0xf")
E("  v_permlane16_swap_b32 v48, v50")
E("  s_nop 0")
E("  v_permlane16_swap_b32 v96, v98")
E("  v_add_f32_dpp v54, v54, v54 row_mirror row_mask:0xf bank_mask:0xf")
E("  v_add_f32 v48, v48, v50")
E("  v_mov_b32 v53, v54")
E("  v_add_f32 v96, v96, v98")
E("  s_nop 1")
E("  v_permlane16_swap_b32 v54, v53")
E("  v_permlane32_swap_b32 v48, v96")
E("  s_nop 1")
E("  v_add_f32 v54, v54, v53         ; L")
E("  v_add_f32 v48, v48, v96")
E("  v_rcp_f32 v54, v54")
E("  s_nop 0")
E("  v_mul_f32 v48, v48, v54")
E("  s_mov_b64 exec, s[60:61]")
E("  ds_write_b32 v13, v48")
E("  s_mov_b64 exec, -1")
E("  s_waitcnt lgkmcnt(0)")
E("  s_barrier                        ; BarO")
for wv in range(4):
    E(f"  ds_read_b128 v[{40+4*wv}:{43+4*wv}], v4 offset:{LDS_O3+wv*128}")
E("  s_waitcnt lgkmcnt(0)")
for j in range(4):
    E(f"  v_add_f32 v{40+j}, v{40+j}, v{44+j}")
    E(f"  v_add_f32 v{48+j}, v{48+j}, v{52+j}")
for j in range(4):
    E(f"  v_add_f32 v{40+j}, v{40+j}, v{48+j}")
E("  v_cvt_pk_bf16_f32 v44, v40, v41")
E("  v_cvt_pk_bf16_f32 v45, v42, v43")
E(f"  v_lshlrev_b32 v{XB}, 16, v44")
E(f"  v_and_b32 v{XB+1}, 0xffff0000, v44")
E(f"  v_lshlrev_b32 v{XB+2}, 16, v45")
E(f"  v_and_b32 v{XB+3}, 0xffff0000, v45")
fma_rows(WO, XB, ACC, 58)
E("  s_nop 1")
for k in range(8):
    E(f"  v_add_f32_dpp v{ACC+k}, v{ACC+k}, v{ACC+k} row_ror:8 row_mask:0xf bank_mask:0xf")
E("  s_nop 1")
for a_, b_ in ((0, 2), (1, 3), (4, 6), (5, 7)):
    E(f"  v_permlane16_swap_b32 v{ACC+a_}, v{ACC+b_}")
E("  s_nop 1")
for a_, b_ in ((0, 2), (1, 3), (4, 6), (5, 7)):
    E(f"  v_add_f32 v{ACC+a_}, v{ACC+a_}, v{ACC+b_}")
E("  s_nop 1")
E(f"  v_permlane32_swap_b32 v{ACC}, v{ACC+4}")
E(f"  v_permlane32_swap_b32 v{ACC+1}, v{ACC+5}")
E("  s_nop 1")
E(f"  v_add_f32 v{ACC}, v{ACC}, v{ACC+4}")
E(f"  v_add_f32 v{ACC+2}, v{ACC+1}, v{ACC+5}")
E(f"  v_mov_b32 v{ACC+1}, s{S_TAG}")
E(f"  v_mov_b32 v{ACC+3}, s{S_TAG}")
E("  s_mov_b64 exec, s[60:61]")
E(f"  buffer_store_dwordx4 v[{ACC}:{ACC+3}], v62, s[{SWS}:{SWS+3}], 0 offen sc1")
E("  s_mov_b64 exec, -1")
STAMP(5)
E(f"  s_cmp_lg_u32 s{S_WAVE}, 0")
E("  s_cbranch_scc1 L_end")
E("  s_lshl_b32 s55, s2, 11")
E(f"  s_add_u32 s55, s55, {WS_OP}")
E("  v_lshlrev_b32 v9, 4, v0")
E("  v_add_u32 v9, s55, v9")
E(f"  s_mov_b32 s62, {POLL_MAX}")
E("L_poll3:")
for k in range(2):
    E(f"  buffer_load_dwordx4 v[{40+4*k}:{43+4*k}], v9, s[{SWS}:{SWS+3}], 0 offen offset:{k*1024} sc1")
E("  s_waitcnt vmcnt(0)")
if STAMPS:
    E(f"  s_cmp_lg_u32 s62, {POLL_MAX}")
    E("  s_cbranch_scc1 L_d2")
    STAMP(10)
    E("L_d2:")
E(f"  v_xor_b32 v56, s{S_TAG}, v41")
for r in (43, 45, 47):
    E(f"  v_xor_b32 v57, s{S_TAG}, v{r}")
    E("  v_or_b32 v56, v56, v57")
E("  v_cmp_ne_u32 vcc, 0, v56")
E("  s_cbranch_vccz L_poll3_done")
E("  s_sub_u32 s62, s62, 1")
E("  s_cmp_lg_u32 s62, 0")
E("  s_cbranch_scc1 L_poll3")
E("L_poll3_done:")
if STAMPS:
    E(f"  s_sub_u32 s91, {POLL_MAX}, s62")
STAMP(6)
E("  v_add_f32 v40, v40, v44")
E("  v_add_f32 v42, v42, v46")
E("  s_nop 1")
E("  v_permlane16_swap_b32 v40, v42")
E("  s_nop 1")
E("  v_add_f32 v40, v40, v42")
E("  v_mov_b32 v42, v40")
E("  s_nop 1")
E("  v_permlane32_swap_b32 v40, v42")
E("  s_nop 1")
E("  v_add_f32 v40, v40, v42")
E("  s_nop 1")
E("  v_add_f32_dpp v40, v40, v40 quad_perm:[1,0,3,2] row_mask:0xf bank_mask:0xf")
E("  s_nop 1")
E("  v_add_f32_dpp v40, v40, v40 quad_perm:[2,3,0,1] row_mask:0xf bank_mask:0xf")
E("  s_nop 1")
E("  v_add_f32_dpp v40, v40, v40 row_half_mirror row_mask:0xf bank_mask:0xf")
E("  s_nop 1")
E("  v_add_f32_dpp v40, v40, v40 row_mirror row_mask:0xf bank_mask:0xf")
E("  s_nop 1")
E("  v_readlane_b32 s55, v40, 16")
E("  v_mov_b32 v42, s55")
E("  v_cvt_pk_bf16_f32 v40, v40, v42")
E(f"  s_lshl_b32 s55, s{S_G}, 7")
E(f"  s_lshl_b32 s56, s{S_IDX}, 2")
E("  s_add_u32 s55, s55, s56")
E("  v_mov_b32 v9, s55")
E("  v_cmp_gt_u32 vcc, 1, v0")
E("  s_and_saveexec_b64 s[60:61], vcc")
E(f"  buffer_store_dword v40, v9, s[{SOUT}:{SOUT+3}], 0 offen")
E("  s_cmp_lg_u32 s2, 0")
E("  s_cbranch_scc1 L_a_nononce")
E(f"  v_mov_b32 v40, s{S_TAG}")
E(f"  v_mov_b32 v9, {WS_NONCE}")
E(f"  buffer_store_dword v40, v9, s[{SWS}:{SWS+3}], 0 offen sc1")
E("L_a_nononce:")
if DBG:
    E("  s_cmp_ge_u32 s2, 8")
    E("  s_cbranch_scc1 L_nodbg")
    E("  s_memrealtime s[78:79]")
    E("  s_waitcnt lgkmcnt(0)")
    E("  v_mov_b32 v40, s76")
    E("  v_mov_b32 v41, s78")
    E("  s_lshl_b32 s55, s2, 3")
    E("  v_mov_b32 v9, s55")
    E("  buffer_store_dwordx2 v[40:41], v9, s[68:71], 0 offen")
    E("L_nodbg:")
E("  s_mov_b64 exec, s[60:61]")
E("  s_branch L_end")

E("L_bwave:")
E(f"  s_sub_u32 s{S_WAVE}, s{S_WAVE}, 4   ; b")
E(f"  s_lshl_b32 s54, s{S_G}, 15")
E("  s_add_u32 s54, s54, 28672")
E(f"  s_lshl_b32 s55, s{S_IDX}, 7")
E("  s_add_u32 s54, s54, s55")
E(f"  s_lshl_b32 s55, s{S_WAVE}, 5")
E("  s_add_u32 s54, s54, s55")
E("  s_lshl_b32 s54, s54, 8")
E("  v_and_b32 v2, 15, v0")
E("  v_lshrrev_b32 v3, 4, v0")
E("  v_lshlrev_b32 v4, 8, v2")
E("  v_lshl_add_u32 v4, v3, 4, v4")
E("  v_add_u32 v4, s54, v4")
E("  s_movk_i32 s56, 0x1000")
KR = 16
def kload(n):
    tt, ks = n >> 2, n & 3
    so = "0" if tt == 0 else "s56"
    r = KR + (tt * 4 + ks) * 4
    E(f"  buffer_load_dwordx4 v[{r}:{r+3}], v4, s[{SK}:{SK+3}], {so} offen offset:{ks*64} {KVF}")
for n in range(KPRE):
    if n >= WB:
        E(f"  s_waitcnt vmcnt({WB-1})")
    kload(n)
E("  v_lshlrev_b32 v5, 1, v3")
E("  v_xor_b32 v5, v5, v2")
E("  v_lshlrev_b32 v6, 8, v3")
E("  v_lshl_add_u32 v7, v5, 4, v6")
E("  v_add_u32 v7, s54, v7")
E("  v_xor_b32 v5, 8, v5")
E("  v_lshl_add_u32 v8, v5, 4, v6")
E("  v_add_u32 v8, s54, v8")
E("  v_add_u32 v8, 0x400, v8")
E(f"  s_lshl_b32 s57, s{S_WAVE}, 13")
E("  v_and_b32 v9, 3, v0")
E("  v_lshlrev_b32 v9, 8, v9")
E("  v_lshl_add_u32 v9, v3, 4, v9")
E(f"  v_add_u32 v9, {LDS_Q}, v9")
E("  v_lshrrev_b32 v10, 2, v2")
E("  v_lshl_add_u32 v10, v3, 2, v10")
E("  v_and_b32 v11, 7, v10")
E("  v_lshlrev_b32 v11, 5, v11")
E("  v_lshl_add_u32 v11, v10, 8, v11")
E("  v_and_b32 v12, 3, v0")
E("  v_lshl_add_u32 v11, v12, 3, v11")
E("  v_add_u32 v11, s57, v11")
E("  v_and_b32 v13, 3, v0")
E("  v_lshlrev_b32 v14, 3, v13")
E("  v_lshlrev_b32 v13, 9, v13")
E("  v_lshl_add_u32 v13, v3, 4, v13")
E(f"  s_lshl_b32 s55, s{S_WAVE}, 11")
E(f"  s_add_u32 s55, s55, {LDS_OPART}")
E("  v_add_u32 v13, s55, v13")
E(f"  s_lshl_b32 s55, s{S_WAVE}, 5")
E(f"  s_add_u32 s55, s55, {LDS_MLP}")
E("  v_add_u32 v14, s55, v14")
E(f"  s_lshl_b32 s55, s{S_WAVE}, 9")
E(f"  s_add_u32 s55, s55, {LDS_OPART}")
E("  v_lshlrev_b32 v15, 3, v0")
E("  v_add_u32 v15, s55, v15")
E(f"  s_lshl_b32 s55, s{S_G}, 2")
E(f"  s_add_u32 s55, s55, s{S_WAVE}")
E("  s_lshl_b32 s55, s55, 5")
E(f"  s_add_u32 s55, s55, s{S_IDX}     ; (g*4+b)*32 + split")
E("  s_lshl_b32 s59, s55, 10")
E(f"  s_add_u32 s59, s59, {WS_AP}")
E("  v_lshlrev_b32 v116, 4, v0")
E("  v_add_u32 v116, s59, v116")
if MLREP:
    E(f"  s_lshl_b32 s59, s{S_G}, 2")
    E(f"  s_add_u32 s59, s59, s{S_WAVE}")
    E("  s_lshl_b32 s59, s59, 12")
    E(f"  s_lshl_b32 s62, s{S_IDX}, 4")
    E("  s_add_u32 s59, s59, s62")
    E(f"  s_add_u32 s59, s59, {WS_ML}")
    E("  v_lshlrev_b32 v117, 9, v0")
    E("  v_add_u32 v117, s59, v117")
else:
    E("  s_lshl_b32 s59, s55, 4")
    E(f"  s_add_u32 s59, s59, {WS_ML}")
    E("  v_mov_b32 v117, s59")
E(f"  s_lshl_b32 s55, s{S_WAVE}, 3")
E(f"  s_add_u32 s55, s55, {LDS_MLP}")
E("  v_mov_b32 v118, s55")
E("  v_cmp_gt_u32 s[60:61], 4, v2")
E("  s_barrier                        ; Bar1")
E("  s_barrier                        ; Bar2")
STAMP(7)
for n in range(KPRE, 8):
    if n >= WB:
        E(f"  s_waitcnt vmcnt({WB-1})")
    kload(n)
STAMP(8)
E("  s_mov_b32 s58, 0x3db504f3       ; 128^-0.5 (f32)")
E("  s_mov_b32 s59, 0x3fb8aa3b       ; log2(e)")
E("  s_waitcnt vmcnt(0) lgkmcnt(0)")
E(f"  s_add_u32 s{S_TAG}, s{S_TAG}, 1")
STAMP(1)
E("  s_barrier                        ; BarQ")
STAMP(2)
QF = 48
for ks in range(4):
    E(f"  ds_read_b128 v[{QF+4*ks}:{QF+4*ks+3}], v9 offset:{ks*64}")
SC = 64
for ks in range(4):
    E(f"  s_waitcnt lgkmcnt({3-ks})")
    for tt in range(2):
        r = KR + (tt * 4 + ks) * 4
        c = "0" if ks == 0 else f"v[{SC+4*tt}:{SC+4*tt+3}]"
        E(f"  v_mfma_f32_16x16x32_bf16 v[{SC+4*tt}:{SC+4*tt+3}], v[{r}:{r+3}], v[{QF+4*ks}:{QF+4*ks+3}], {c}")
E("  s_nop 7")
E("  s_nop 3")
for j in range(4):
    E(f"  v_cvt_pk_bf16_f32 v{72+j}, v{SC+2*j}, v{SC+2*j+1}")
for j in range(4):
    E(f"  v_lshlrev_b32 v{SC+2*j}, 16, v{72+j}")
    E(f"  v_and_b32 v{SC+2*j+1}, 0xffff0000, v{72+j}")
for j in range(8):
    E(f"  v_mul_f32 v{SC+j}, s58, v{SC+j}")
for j in range(4):
    E(f"  v_cvt_pk_bf16_f32 v{72+j}, v{SC+2*j}, v{SC+2*j+1}")
for j in range(4):
    E(f"  v_lshlrev_b32 v{SC+2*j}, 16, v{72+j}")
    E(f"  v_and_b32 v{SC+2*j+1}, 0xffff0000, v{72+j}")
for j in range(8):
    E(f"  v_mul_f32 v{SC+j}, s59, v{SC+j}")
E(f"  v_max3_f32 v76, v{SC}, v{SC+1}, v{SC+2}")
E(f"  v_max3_f32 v77, v{SC+3}, v{SC+4}, v{SC+5}")
E(f"  v_max3_f32 v76, v76, v{SC+6}, v{SC+7}")
E("  v_max_f32 v76, v76, v77")
E("  v_mov_b32 v77, v76")
E("  s_nop 1")
E("  v_permlane16_swap_b32 v76, v77")
E("  s_nop 1")
E("  v_max_f32 v76, v76, v77")
E("  v_mov_b32 v77, v76")
E("  s_nop 1")
E("  v_permlane32_swap_b32 v76, v77")
E("  s_nop 1")
E("  v_max_f32 v76, v76, v77         ; m_w")
for j in range(8):
    E(f"  v_sub_f32 v{SC+j}, v{SC+j}, v76")
for j in range(8):
    E(f"  v_exp_f32 v{SC+j}, v{SC+j}")
E("  s_nop 0")
for j in range(4):
    E(f"  v_cvt_pk_bf16_f32 v{72+j}, v{SC+2*j}, v{SC+2*j+1}")
E(f"  v_add_f32 v77, v{SC}, v{SC+1}")
E(f"  v_add_f32 v78, v{SC+2}, v{SC+3}")
E(f"  v_add_f32 v79, v{SC+4}, v{SC+5}")
E(f"  v_add_f32 v80, v{SC+6}, v{SC+7}")
E("  v_add_f32 v77, v77, v78")
E("  v_add_f32 v79, v79, v80")
E("  v_add_f32 v77, v77, v79")
E("  v_mov_b32 v78, v77")
E("  s_nop 1")
E("  v_permlane16_swap_b32 v77, v78")
E("  s_nop 1")
E("  v_add_f32 v77, v77, v78")
E("  v_mov_b32 v78, v77")
E("  s_nop 1")
E("  v_permlane32_swap_b32 v77, v78")
E("  s_nop 1")
E("  v_add_f32 v77, v77, v78         ; l_w")
STAMP(3)
E("  s_barrier                        ; BarV")
STAMP(4)
VF = 84
for t in range(8):
    E(f"  v_xor_b32 v12, {t*32}, v11")
    E(f"  ds_read_b64_tr_b16 v[{VF+4*t}:{VF+4*t+1}], v12")
    E(f"  ds_read_b64_tr_b16 v[{VF+4*t+2}:{VF+4*t+3}], v12 offset:4096")
OA = 16
for t in range(8):
    E(f"  s_waitcnt lgkmcnt({14-2*t})")
    E(f"  v_mfma_f32_16x16x32_bf16 v[{OA+4*t}:{OA+4*t+3}], v[{VF+4*t}:{VF+4*t+3}], v[72:75], 0")
E("  s_mov_b64 exec, s[60:61]")
E("  ds_write_b64 v14, v[76:77]")
E("  s_nop 4")
for t in range(8):
    E(f"  ds_write_b128 v13, v[{OA+4*t}:{OA+4*t+3}] offset:{64*t}")
E("  s_mov_b64 exec, -1")
E("  s_waitcnt lgkmcnt(0)")
E("  s_barrier                        ; BarC")
STAMP(5)
for wv in range(4):
    E(f"  ds_read_b64 v[{48+2*wv}:{49+2*wv}], v118 offset:{wv*32}")
for wv in range(4):
    E(f"  ds_read_b64 v[{56+2*wv}:{57+2*wv}], v15 offset:{wv*2048}")
E("  s_waitcnt lgkmcnt(4)")
E("  v_max3_f32 v32, v48, v50, v52")
E("  v_max_f32 v32, v32, v54         ; M")
for wv in range(4):
    E(f"  v_sub_f32 v{33+wv}, v{48+2*wv}, v32")
for wv in range(4):
    E(f"  v_exp_f32 v{33+wv}, v{33+wv}")
E("  s_nop 0")
E("  v_mul_f32 v38, v33, v49")
for wv in range(1, 4):
    E(f"  v_fmac_f32 v38, v{33+wv}, v{49+2*wv}")
E("  s_waitcnt lgkmcnt(0)")
E("  v_mul_f32 v40, v33, v56")
E("  v_mul_f32 v42, v33, v57")
for wv in range(1, 4):
    E(f"  v_fmac_f32 v40, v{33+wv}, v{56+2*wv}")
    E(f"  v_fmac_f32 v42, v{33+wv}, v{57+2*wv}")
E(f"  v_mov_b32 v41, s{S_TAG}")
E(f"  v_mov_b32 v43, s{S_TAG}")
E(f"  buffer_store_dwordx4 v[40:43], v116, s[{SWS}:{SWS+3}], 0 offen sc1")
E("  v_mov_b32 v44, v32")
E(f"  v_mov_b32 v45, s{S_TAG}")
E("  v_mov_b32 v46, v38")
E(f"  v_mov_b32 v47, s{S_TAG}")
E(f"  v_cmp_gt_u32 vcc, {8 if MLREP else 1}, v0")
E("  s_and_saveexec_b64 s[60:61], vcc")
E(f"  buffer_store_dwordx4 v[44:47], v117, s[{SWS}:{SWS+3}], 0 offen sc1")
E("  s_mov_b64 exec, s[60:61]")
E("  s_branch L_end")
E("L_cwave:")
E(f"  s_sub_u32 s{S_WAVE}, s{S_WAVE}, 8   ; c")
E(f"  s_lshl_b32 s54, s{S_G}, 15")
E("  s_add_u32 s54, s54, 28672")
E(f"  s_lshl_b32 s55, s{S_IDX}, 7")
E("  s_add_u32 s54, s54, s55")
E(f"  s_lshl_b32 s55, s{S_WAVE}, 5")
E("  s_add_u32 s54, s54, s55")
E("  s_lshl_b32 s54, s54, 8")
E("  v_and_b32 v2, 15, v0")
E("  v_lshrrev_b32 v3, 4, v0")
E("  v_lshlrev_b32 v5, 1, v3")
E("  v_xor_b32 v5, v5, v2")
E("  v_lshlrev_b32 v6, 8, v3")
E("  v_lshl_add_u32 v7, v5, 4, v6")
E("  v_add_u32 v7, s54, v7")
E("  v_xor_b32 v5, 8, v5")
E("  v_lshl_add_u32 v8, v5, 4, v6")
E("  v_add_u32 v8, s54, v8")
E("  v_add_u32 v8, 0x400, v8")
E(f"  s_lshl_b32 s57, s{S_WAVE}, 13")
for i in range(8):
    if i == VPRE:
        E("  s_barrier                        ; Bar1")
        E("  s_barrier                        ; Bar2")
        STAMP(7)
    if i >= WC:
        E(f"  s_waitcnt vmcnt({WC-1})")
    E(f"  s_add_u32 m0, s57, {i*1024}")
    E(f"  s_movk_i32 s58, {(i>>1)*2048}")
    E(f"  buffer_load_dwordx4 v{7 + (i&1)}, s[{SV}:{SV+3}], s58 offen {KVF} lds")
if VPRE >= 8:
    E("  s_barrier                        ; Bar1")
    E("  s_barrier                        ; Bar2")
STAMP(8)
E("  s_barrier                        ; BarQ")
E("  s_waitcnt vmcnt(0)")
STAMP(1)
E("  s_barrier                        ; BarV")

E("L_end:")
if STAMPS:
    STAMP(15)
    E("  s_mov_b64 exec, -1")
    E("  v_mov_b32 v40, 0")
    for i in range(16):
        E(f"  v_writelane_b32 v40, s{80+i}, {i}")
    E("  s_lshl_b32 s55, s2, 3")
    E("  s_and_b32 s56, s34, 7")
    E("  s_add_u32 s55, s55, s56")
    E("  s_lshr_b32 s56, s34, 3")
    E("  s_lshl_b32 s56, s56, 11")
    E("  s_add_u32 s55, s55, s56")
    E("  s_lshl_b32 s55, s55, 6")
    E(f"  s_add_u32 s55, s55, {WS_STAMP}")
    E("  v_lshlrev_b32 v9, 2, v0")
    E("  v_add_u32 v9, s55, v9")
    E("  v_cmp_gt_u32 vcc, 16, v0")
    E("  s_and_saveexec_b64 s[60:61], vcc")
    E(f"  buffer_store_dword v40, v9, s[{SWS}:{SWS+3}], 0 offen")
    E("  s_mov_b64 exec, s[60:61]")
E("L_end2:")
E("  s_endpgm")
E('.section .rodata,"a"')
E(".p2align 6")
E(".amdhsa_kernel standalone__sliding_block_cached__decode_kernel")
E("  .amdhsa_next_free_vgpr 128")
E("  .amdhsa_next_free_sgpr 100")
E("  .amdhsa_accum_offset 128")
E("  .amdhsa_group_segment_fixed_size 0")
E("  .amdhsa_kernarg_size 64")
E("  .amdhsa_user_sgpr_count 2")
E("  .amdhsa_user_sgpr_kernarg_segment_ptr 1")
E("  .amdhsa_system_sgpr_workgroup_id_x 1")
E(".end_amdhsa_kernel")
open(OUT, "w").write("\n".join(L) + "\n")
print("wrote", OUT, len(L), "lines")
```

```python
import sys, os
OUT = sys.argv[1] if len(sys.argv) > 1 else "standalone__sliding_block_cached__decode.s"
L = []
def E(s=""):
    L.append(s)
STAMPS = int(os.environ.get("STAMPS", "0"))
Q0 = int(os.environ.get("Q0", "40"))
QS = int(os.environ.get("QS", "1"))
WOLATE = int(os.environ.get("WOLATE", "0"))
BD = int(os.environ.get("BD", "0"))
NP = int(os.environ.get("NP", "32"))
KPRE = int(os.environ.get("KPRE", "5"))
VPRE = int(os.environ.get("VPRE", "0"))
QSLEEP = int(os.environ.get("QSLEEP", "12"))
P2S = int(os.environ.get("P2S", "6"))
P3S = int(os.environ.get("P3S", "0"))
MLF = int(os.environ.get("MLF", "1"))
QP0 = int(os.environ.get("QP0", "8"))
SH = int(os.environ.get("SH", "4"))
NPOLL = int(os.environ.get("NPOLL", "64"))
CP = 512 // NP; LS = CP // 8; NLD = 2 * LS; NG = CP // 2; RPS = 64 // NG
LOG = {1:0, 2:1, 4:2, 8:3, 16:4, 32:5, 64:6}
NREP = min(8 * RPS, 32)
KVF = WQF = WOF = "nt"
VST = 127
def STAMP(i):
    if STAMPS:
        E("  s_memrealtime s[100:101]")
        E("  s_waitcnt lgkmcnt(0)")
        E(f"  v_writelane_b32 v{VST}, s100, {i}")

WS_NONCE = 0
WS_ML = 0x30000
WS_AP = 0x40000
WS_OP = 0x140000
WS_QP = 0x10000
WS_SIZE = 0x1c0000 if not STAMPS else 0x400000
WS_STAMP = 0x300000

LDS_V = 0
LDS_Q = 32768
LDS_OPART = 33792
LDS_P1 = 33792
LDS_MLP = 41984
LDS_O3 = 42240
LDS_SIZE = 42752
POLL_MAX = 200000

hdr = open("standalone__sliding_block_cached__decode.s.ref").read().split("\n")
for ln in hdr:
    if ln.startswith("; @launch"):
        break
    E(ln)
E(f"; @launch grid=(256,1,1) block=(512,1,1) lds={LDS_SIZE}")
E('.amdgcn_target "amdgcn-amd-amdhsa--gfx950"')
E(".text")
E(".globl standalone__sliding_block_cached__decode_kernel")
E(".p2align 8")
E(".type standalone__sliding_block_cached__decode_kernel,@function")
E("standalone__sliding_block_cached__decode_kernel:")

SWS, SK, SV, SWO, SOUT, SX, SWQ = 4, 8, 12, 16, 20, 24, 28
S_TAG, S_WAVE, S_G, S_IDX = 90, 91, 92, 93
S_W8 = 3
M1, M2 = "s[94:95]", "s[96:97]"
T0, T1, T2, T3, T4, T5, T6 = ["s%d" % i for i in range(32, 39)]
def srd(base, ptr_lo, nbytes):
    E(f"  s_mov_b32 s{base}, s{ptr_lo}")
    E(f"  s_and_b32 s{base+1}, s{ptr_lo+1}, 0xffff")
    E(f"  s_mov_b32 s{base+2}, {nbytes}")
    E(f"  s_mov_b32 s{base+3}, 0x00020000")

E("  s_cmp_ge_u32 s2, 256")
E("  s_cbranch_scc1 L_end2")
E("  s_load_dwordx16 s[40:55], s[0:1], 0")
E("  v_lshrrev_b32 v1, 6, v0")
E("  v_and_b32 v0, 63, v0            ; lane")
E(f"  s_and_b32 s{S_G}, s2, 7")
E(f"  s_lshr_b32 s{S_IDX}, s2, 3")
E(f"  v_readfirstlane_b32 s{S_W8}, v1")
if STAMPS:
    E(f"  v_mov_b32 v{VST}, 0")
STAMP(0)
E("  s_waitcnt lgkmcnt(0)")
E(f"  s_load_dword s{S_TAG}, s[54:55], {WS_NONCE}")
E("  s_mov_b32 s88, s54")
E("  s_mov_b32 s89, s55")
srd(SX, 40, 1024)
srd(SK, 42, 67108864)
srd(SV, 44, 67108864)
srd(SWQ, 46, 4194304)
srd(SWO, 48, 4194304)
srd(SOUT, 50, 1024)
srd(SWS, 54, WS_SIZE)
E(f"  s_and_b32 s{S_WAVE}, s{S_W8}, 3")
def kaddr():
    E(f"  s_lshl_b32 {T3}, s{S_G}, 15")
    E(f"  s_add_u32 {T3}, {T3}, 28672")
    E(f"  s_lshl_b32 {T1}, s{S_IDX}, 7")
    E(f"  s_add_u32 {T3}, {T3}, {T1}")
    E(f"  s_lshl_b32 {T1}, s{S_WAVE}, 5")
    E(f"  s_add_u32 {T3}, {T3}, {T1}")
    E(f"  s_lshl_b32 {T3}, {T3}, 8")
    E("  v_and_b32 v122, 15, v0")
    E("  v_lshrrev_b32 v123, 4, v0")
    E("  v_lshlrev_b32 v122, 8, v122")
    E("  v_lshl_add_u32 v122, v123, 4, v122")
    E(f"  v_add_u32 v122, {T3}, v122")
    E(f"  s_movk_i32 {T1}, 0x1000")
KR = 16
def kload(n):
    tt, ks = n >> 2, n & 3
    so = "0" if tt == 0 else T1
    r = KR + (tt * 4 + ks) * 4
    E(f"  buffer_load_dwordx4 v[{r}:{r+3}], v122, s[{SK}:{SK+3}], {so} offen offset:{ks*64} {KVF}")
def tagcheck(regs, label_ok):
    E(f"  v_xor_b32 v56, s{S_TAG}, v{regs[0]}")
    for r in regs[1:]:
        E(f"  v_xor_b32 v57, s{S_TAG}, v{r}")
        E("  v_or_b32 v56, v56, v57")
    E("  v_cmp_ne_u32 vcc, 0, v56")
    E(f"  s_cbranch_vccz {label_ok}")

def qpoll(vt0, vt1, vt2):
    E(f"  s_lshl_b32 s98, s{S_G}, 11")
    E(f"  s_lshl_b32 s99, s{S_WAVE}, 9")
    E("  s_add_u32 s98, s98, s99")
    E(f"  s_add_u32 s98, s98, {WS_QP}")
    E(f"  s_lshr_b32 s99, s99, 1")
    E(f"  v_lshlrev_b32 v{vt0}, 2, v0")
    E(f"  v_add_u32 v{vt0}, s99, v{vt0}")
    E(f"  v_add_u32 v{vt0}, {LDS_Q}, v{vt0}")
    if NP < 32:
        E(f"  s_cmp_lt_u32 s{S_IDX}, {NP}")
        E(f"  s_cbranch_scc1 L_q_go")
        n = Q0
        while n > 0:
            E(f"  s_sleep {min(n, 127)}")
            n -= 127
    E("L_q_go:")
    E("  s_mov_b32 s99, 0")
    E("  s_mov_b32 s96, 0")
    E("L_q_loop:")
    for h in range(2):
        E(f"  s_bitcmp1_b32 s96, {h}")
        E(f"  s_cbranch_scc1 L_q_next{h}")
        for c in range(4):
            E(f"  s_add_u32 s97, s98, {h*256+c*64}")
            E(f"  s_load_dwordx16 s[{24+16*c}:{39+16*c}], s[88:89], s97 glc")
        E("  s_waitcnt lgkmcnt(0)")
        for c in range(4):
            b = 24 + 16 * c
            E(f"  s_xor_b32 vcc_lo, s{b+1}, s{S_TAG}")
            for j in range(1, 8):
                E(f"  s_xor_b32 vcc_hi, s{b+1+2*j}, s{S_TAG}")
                E("  s_or_b32 vcc_lo, vcc_lo, vcc_hi")
            E(f"  s_cbranch_scc1 L_q_next{h}")
        for j in range(32):
            E(f"  v_writelane_b32 v{vt1}, s{24+2*j}, {32*h+j}")
        E(f"  s_bitset1_b32 s96, {h}")
        E(f"L_q_next{h}:")
    E("  s_cmp_eq_u32 s96, 3")
    E("  s_cbranch_scc1 L_q_write")
    if QS:
        E(f"  s_sleep {QS}")
    E("  s_add_u32 s99, s99, 1")
    E(f"  s_cmp_lt_u32 s99, {NPOLL}")
    E("  s_cbranch_scc1 L_q_loop")
    E(f"  v_lshlrev_b32 v{vt2}, 3, v0")
    E(f"  v_add_u32 v{vt2}, s98, v{vt2}")
    E(f"  s_mov_b32 s99, {POLL_MAX}")
    E("L_q_fb:")
    E(f"  buffer_load_dwordx2 v[{vt1}:{vt1+1}], v{vt2}, s[{SWS}:{SWS+3}], 0 offen sc1")
    E("  s_waitcnt vmcnt(0)")
    E(f"  v_cmp_ne_u32 vcc, s{S_TAG}, v{vt1+1}")
    E("  s_cbranch_vccz L_q_write")
    E("  s_sleep 4")
    E("  s_sub_u32 s99, s99, 1")
    E("  s_cmp_lg_u32 s99, 0")
    E("  s_cbranch_scc1 L_q_fb")
    E("L_q_write:")
    E(f"  ds_write_b32 v{vt0}, v{vt1}")

E(f"  s_cmp_ge_u32 s{S_W8}, 4")
E("  s_cbranch_scc1 L_bwave")
E("L_awave:")
E("  s_setprio 3")
if NP < 32:
    E(f"  s_cmp_ge_u32 s{S_IDX}, {NP}")
    E("  s_cbranch_scc1 L_a_pre")
E(f"  v_lshrrev_b32 v112, {LOG[LS]}, v0")
E(f"  v_and_b32 v113, {LS-1}, v0")
E(f"  s_add_u32 {T0}, s{S_G}, 1")
E(f"  s_and_b32 {T0}, {T0}, 7")
E(f"  s_lshl_b32 {T0}, {T0}, 9")
E(f"  s_lshl_b32 {T1}, s{S_IDX}, {LOG[CP]}")
E(f"  s_add_u32 {T0}, {T0}, {T1}")
E(f"  s_lshl_b32 {T1}, s{S_WAVE}, 7")
E(f"  v_lshlrev_b32 v114, {LOG[NLD]}, v112")
E(f"  v_add_u32 v114, {T1}, v114          ; row0")
E("  v_lshlrev_b32 v115, 13, v114")
E("  v_lshl_add_u32 v115, v113, 4, v115")
E(f"  s_lshl_b32 {T2}, {T0}, 1")
E(f"  v_add_u32 v115, {T2}, v115")
E("  v_lshlrev_b32 v114, 1, v114")
WQ = 16
xl = {8: "dwordx4 v[120:123]", 4: "dwordx2 v[120:121]"}[NLD]
for i in range(NLD):
    if i == 0:
        so = "0"
    else:
        E(f"  s_mov_b32 {T1}, {i*8192}")
        so = T1
    E(f"  buffer_load_dwordx4 v[{WQ+4*i}:{WQ+4*i+3}], v115, s[{SWQ}:{SWQ+3}], {so} offen {WQF}")
    if i == 0:
        E(f"  buffer_load_{xl}, v114, s[{SX}:{SX+3}], 0 offen")
E("  v_lshrrev_b32 v116, 4, v0         ; R")
E("  v_lshl_add_u32 v116, v113, 3, v116")
E("  v_lshlrev_b32 v116, 2, v116")
E(f"  s_lshl_b32 {T1}, s{S_WAVE}, {LOG[CP]+2}")
E(f"  s_add_u32 {T1}, {T1}, {LDS_P1}")
E(f"  v_add_u32 v116, {T1}, v116")
E(f"  v_and_b32 v117, {NG-1}, v0")
E("  v_lshlrev_b32 v117, 3, v117         ; j*8")
E(f"  s_lshl_b32 {T1}, {T0}, 2")
E(f"  s_add_u32 {T1}, {T1}, {WS_QP}")
E(f"  v_add_u32 v118, {T1}, v117")
E(f"  v_and_b32 v119, {15 & ~(LS-1)}, v0")
E(f"  v_cmp_eq_u32 {M2}, 0, v119")
E("L_a_pre:")
E(f"  s_lshl_b32 {T0}, s{S_G}, 11")
E(f"  s_add_u32 {T0}, {T0}, {WS_QP}")
E("  v_lshlrev_b32 v60, 4, v0")
E(f"  v_add_u32 v60, {T0}, v60")
E("  v_lshlrev_b32 v61, 3, v0")
E(f"  v_add_u32 v61, {LDS_Q}, v61")
E("  v_lshrrev_b32 v8, 4, v0         ; R")
E("  v_and_b32 v14, 7, v0")
E("  v_lshlrev_b32 v14, 3, v14       ; (l&7)*8")
E(f"  s_lshr_b32 {T0}, s{S_G}, 1")
E(f"  s_add_u32 {T0}, {T0}, 1")
E(f"  s_and_b32 {T0}, {T0}, 3")
E(f"  s_lshl_b32 {T0}, {T0}, 3")
E(f"  s_lshr_b32 {T2}, s{S_IDX}, 2")
E(f"  s_add_u32 {T2}, {T2}, {T0}         ; h3")
E(f"  s_and_b32 {T3}, s{S_IDX}, 3       ; quarter")
E(f"  s_and_b32 {T4}, s{S_G}, 1")
E(f"  s_xor_b32 {T4}, {T4}, 1")
E(f"  s_lshl_b32 {T5}, s{S_WAVE}, 1")
E(f"  s_add_u32 {T4}, {T4}, {T5}")
E("  v_and_b32 v3, 7, v0             ; c")
E("  v_lshrrev_b32 v2, 3, v0         ; rgrp")
E(f"  s_lshl_b32 {T0}, {T2}, 7")
E(f"  s_lshl_b32 {T1}, {T3}, 5")
E(f"  s_add_u32 {T0}, {T0}, {T1}")
E("  v_lshlrev_b32 v4, 2, v2")
E(f"  v_add_u32 v4, {T0}, v4           ; row0")
E("  v_lshlrev_b32 v5, 10, v4")
E("  v_lshl_add_u32 v5, v3, 4, v5")
E(f"  s_lshl_b32 {T1}, {T4}, 7")
E(f"  v_add_u32 v5, {T1}, v5")
E(f"  s_lshl_b32 {T0}, {T2}, 9")
E(f"  s_add_u32 {T0}, {T0}, {WS_ML}")
E("  v_and_b32 v9, 31, v0")
E("  v_lshlrev_b32 v9, 4, v9")
E(f"  v_add_u32 v9, {T0}, v9")
E(f"  s_lshl_b32 {T1}, s{S_WAVE}, 7")
E(f"  s_add_u32 {T0}, {T0}, {T1}")
E("  v_lshlrev_b32 v12, 4, v2")
E(f"  v_add_u32 v12, {T0}, v12")
E(f"  s_lshl_b32 {T0}, {T2}, 15")
E(f"  s_lshl_b32 {T1}, s{S_WAVE}, 13")
E(f"  s_add_u32 {T0}, {T0}, {T1}")
E(f"  s_lshl_b32 {T1}, {T3}, 8")
E(f"  s_add_u32 {T0}, {T0}, {T1}")
E(f"  s_add_u32 {T0}, {T0}, {WS_AP}")
E("  v_lshlrev_b32 v15, 10, v2")
E("  v_lshl_add_u32 v15, v14, 2, v15")
E(f"  v_add_u32 v15, {T0}, v15")
E("  v_lshlrev_b32 v13, 2, v8")
E("  v_lshl_add_u32 v13, v14, 1, v13")
E(f"  s_lshl_b32 {T1}, s{S_WAVE}, 7")
E(f"  s_add_u32 {T1}, {T1}, {LDS_O3}")
E(f"  v_add_u32 v13, {T1}, v13")
E("  v_and_b32 v4, 8, v0")
E(f"  v_cmp_eq_u32 {M1}, 0, v4")
E("  v_lshlrev_b32 v4, 4, v2")
E("  v_lshl_add_u32 v62, v3, 2, v8")
E("  v_lshlrev_b32 v62, 14, v62")
E(f"  s_lshl_b32 {T0}, {T4}, 11")
E(f"  s_lshr_b32 {T1}, s{S_G}, 1")
E(f"  s_lshl_b32 {T1}, {T1}, 5")
E(f"  s_add_u32 {T1}, {T1}, s{S_IDX}")
E(f"  s_lshl_b32 {T1}, {T1}, 4")
E(f"  s_add_u32 {T0}, {T0}, {T1}")
E(f"  s_add_u32 {T0}, {T0}, {WS_OP}")
E(f"  v_add_u32 v62, {T0}, v62")
E(f"  s_lshl_b32 {T0}, s2, 11")
E(f"  s_add_u32 {T0}, {T0}, {WS_OP}")
E("  v_lshlrev_b32 v1, 4, v0")
E(f"  v_add_u32 v1, {T0}, v1")

E("  s_waitcnt lgkmcnt(0)")
E(f"  s_add_u32 s{S_TAG}, s{S_TAG}, 1")
if NP < 32:
    E(f"  s_cmp_ge_u32 s{S_IDX}, {NP}")
    E("  s_cbranch_scc1 L_a_poll")
E(f"  s_waitcnt vmcnt({NLD-1})")
for k in range(NLD // 2):
    E(f"  v_lshlrev_b32 v{48+2*k}, 16, v{120+k}")
    E(f"  v_and_b32 v{49+2*k}, 0xffff0000, v{120+k}")
ACC = 64
for i in range(NLD):
    if i:
        E(f"  s_waitcnt vmcnt({NLD-1-i})")
    for k in range(4):
        w = WQ + 4 * i + k
        E(f"  v_lshlrev_b32 v{72+2*(k&1)}, 16, v{w}")
        E(f"  v_and_b32 v{73+2*(k&1)}, 0xffff0000, v{w}")
        op = "v_mul_f32" if i == 0 else "v_fmac_f32"
        E(f"  {op} v{ACC+2*k}, v{48+i}, v{72+2*(k&1)}")
        E(f"  {op} v{ACC+2*k+1}, v{48+i}, v{73+2*(k&1)}")
STAMP(1)
E("  s_nop 1")
steps = []
if LS <= 2: steps.append("quad_perm:[2,3,0,1]")
if LS <= 4: steps.append("row_ror:4")
steps.append("row_ror:8")
for stp in steps:
    for k in range(8):
        E(f"  v_add_f32_dpp v{ACC+k}, v{ACC+k}, v{ACC+k} {stp} row_mask:0xf bank_mask:0xf")
E("  s_nop 1")
for k in range(4):
    E(f"  v_permlane16_swap_b32 v{ACC+2*k}, v{ACC+2*k+1}")
E("  s_nop 1")
for k in range(4):
    E(f"  v_add_f32 v{ACC+2*k}, v{ACC+2*k}, v{ACC+2*k+1}")
E("  s_nop 1")
E(f"  v_permlane32_swap_b32 v{ACC}, v{ACC+2}")
E(f"  v_permlane32_swap_b32 v{ACC+4}, v{ACC+6}")
E("  s_nop 1")
E(f"  v_add_f32 v{ACC}, v{ACC}, v{ACC+2}")
E(f"  v_add_f32 v{ACC+4}, v{ACC+4}, v{ACC+6}")
E(f"  s_mov_b64 exec, {M2}")
E(f"  ds_write2_b32 v116, v{ACC}, v{ACC+4} offset0:0 offset1:4")
E("  s_mov_b64 exec, -1")
E("  s_waitcnt lgkmcnt(0)")
E("  s_barrier                        ; Bar1")
STAMP(9)
E(f"  s_cmp_lg_u32 s{S_WAVE}, 0")
E("  s_cbranch_scc1 L_p_nopub")
for wv in range(4):
    E(f"  ds_read_b64 v[{48+2*wv}:{49+2*wv}], v117 offset:{LDS_P1+wv*CP*4}")
E("  s_waitcnt lgkmcnt(0)")
for st in (1, 2):
    for wv in range(0, 4, 2 * st):
        E(f"  v_add_f32 v{48+2*wv}, v{48+2*wv}, v{48+2*(wv+st)}")
        E(f"  v_add_f32 v{49+2*wv}, v{49+2*wv}, v{49+2*(wv+st)}")
E("  v_cvt_pk_bf16_f32 v48, v48, v49")
E(f"  v_mov_b32 v49, s{S_TAG}")
E(f"  s_mov_b64 exec, {(1 << NG) - 1}")
E(f"  buffer_store_dwordx2 v[48:49], v118, s[{SWS}:{SWS+3}], 0 offen sc1")
E("  s_mov_b64 exec, -1")
E("L_p_nopub:")
E("  s_barrier")
STAMP(2)
E("L_a_poll:")
E(f"  s_cmp_lg_u32 s{S_WAVE}, 1")
E("  s_cbranch_scc1 L_a_noq")
def qissue(i):
    b = 64 + 8 * i
    E(f"  buffer_load_dwordx4 v[{b}:{b+3}], v60, s[{SWS}:{SWS+3}], 0 offen sc1")
    E(f"  buffer_load_dwordx4 v[{b+4}:{b+7}], v60, s[{SWS}:{SWS+3}], 0 offen offset:1024 sc1")
for i in range(4):
    E(f"  s_sleep {QSLEEP}")
    qissue(i)
E(f"  s_mov_b32 s99, {POLL_MAX}")
E("L_poll1:")
for i in range(4):
    b = 64 + 8 * i
    E("  s_waitcnt vmcnt(6)")
    tagcheck([b + 1, b + 3, b + 5, b + 7], f"L_q_ok{i}")
    qissue(i)
E("  s_sub_u32 s99, s99, 1")
E("  s_cmp_lg_u32 s99, 0")
E("  s_cbranch_scc1 L_poll1")
for i in range(4):
    b = 64 + 8 * i
    E(f"L_q_ok{i}:")
    E(f"  v_mov_b32 v{b+1}, v{b+2}")
    E(f"  v_mov_b32 v{b+5}, v{b+6}")
    E(f"  ds_write_b64 v61, v[{b}:{b+1}]")
    E(f"  ds_write_b64 v61, v[{b+4}:{b+5}] offset:512")
    if i < 3:
        E("  s_branch L_q_done")
E("L_q_done:")
STAMP(7)
E("  s_waitcnt lgkmcnt(0)")
E("L_a_noq:")
E("  s_barrier                        ; BarQ")
XS = [10, 11, 6, 7]
ACC = 32
WO = 16
if WOLATE:
    E("  s_barrier                        ; BarC")
E(f"  buffer_load_dwordx4 v[{WO}:{WO+3}], v5, s[{SWO}:{SWO+3}], 0 offen {WOF}")
E(f"  buffer_load_dwordx4 v[{WO+4}:{WO+7}], v5, s[{SWO}:{SWO+3}], 0 offen offset:1024 {WOF}")
E(f"  buffer_load_dwordx4 v[{WO+8}:{WO+11}], v5, s[{SWO}:{SWO+3}], 0 offen offset:2048 {WOF}")
E(f"  buffer_load_dwordx4 v[{WO+12}:{WO+15}], v5, s[{SWO}:{SWO+3}], 0 offen offset:3072 {WOF}")
if not WOLATE:
    E("  s_barrier                        ; BarC")
STAMP(3)
def p2issue():
    b = 96
    E(f"  buffer_load_dwordx4 v[{b}:{b+3}], v9, s[{SWS}:{SWS+3}], 0 offen sc1")
    E(f"  buffer_load_dwordx4 v[{b+4}:{b+7}], v12, s[{SWS}:{SWS+3}], 0 offen sc1")
    E(f"  buffer_load_dwordx4 v[{b+8}:{b+11}], v15, s[{SWS}:{SWS+3}], 0 offen sc1")
    E(f"  buffer_load_dwordx4 v[{b+12}:{b+15}], v15, s[{SWS}:{SWS+3}], 0 offen offset:16 sc1")
if MLF:
    E(f"  buffer_load_dwordx4 v[96:99], v9, s[{SWS}:{SWS+3}], 0 offen sc1")
    E("  s_waitcnt vmcnt(1)")
else:
    p2issue()
    E("  s_waitcnt vmcnt(4)")
WU = 64
for i in range(4):
    for k in range(4):
        w = WO + 4 * i + k
        E(f"  v_lshlrev_b32 v{WU+8*i+2*k}, 16, v{w}")
        E(f"  v_and_b32 v{WU+8*i+2*k+1}, 0xffff0000, v{w}")
E(f"  s_mov_b32 s99, {POLL_MAX}")
if MLF:
    E("L_poll2a:")
    E("  s_waitcnt vmcnt(0)")
    tagcheck([97, 99], "L_poll2a_done")
    if P2S:
        E(f"  s_sleep {P2S}")
    E(f"  buffer_load_dwordx4 v[96:99], v9, s[{SWS}:{SWS+3}], 0 offen sc1")
    E("  s_sub_u32 s99, s99, 1")
    E("  s_cmp_lg_u32 s99, 0")
    E("  s_cbranch_scc1 L_poll2a")
    E("  s_waitcnt vmcnt(0)")
    E("L_poll2a_done:")
    p2issue()
    E(f"  s_mov_b32 s99, {POLL_MAX}")
E("L_poll2:")
E("  s_waitcnt vmcnt(0)")
tagcheck([97 + 2 * k for k in range(8)], "L_poll2_done")
if P2S and not MLF:
    E(f"  s_sleep {P2S}")
p2issue()
E("  s_sub_u32 s99, s99, 1")
E("  s_cmp_lg_u32 s99, 0")
E("  s_cbranch_scc1 L_poll2")
E("  s_waitcnt vmcnt(0)")
E("L_poll2_done:")
STAMP(4)
E("  v_max_f32_dpp v52, v96, v96 quad_perm:[1,0,3,2] row_mask:0xf bank_mask:0xf")
E("  s_nop 1")
E("  v_max_f32_dpp v52, v52, v52 quad_perm:[2,3,0,1] row_mask:0xf bank_mask:0xf")
E("  s_nop 1")
E("  v_max_f32_dpp v52, v52, v52 row_half_mirror row_mask:0xf bank_mask:0xf")
E("  s_nop 1")
E("  v_max_f32_dpp v52, v52, v52 row_mirror row_mask:0xf bank_mask:0xf")
E("  s_nop 0")
E("  v_mov_b32 v53, v52")
E("  s_nop 1")
E("  v_permlane16_swap_b32 v52, v53")
E("  s_nop 1")
E("  v_max_f32 v52, v52, v53         ; M")
E("  v_sub_f32 v54, v96, v52")
E("  v_sub_f32 v55, v100, v52")
E("  v_exp_f32 v54, v54")
E("  v_exp_f32 v55, v55")
E("  s_nop 0")
E("  v_mul_f32 v54, v54, v98")
E("  v_mul_f32 v48, v55, v104")
E("  v_mul_f32 v50, v55, v106")
E("  v_mul_f32 v46, v55, v108")
E("  v_mul_f32 v47, v55, v110")
E("  v_add_f32_dpp v54, v54, v54 quad_perm:[1,0,3,2] row_mask:0xf bank_mask:0xf")
E("  v_add_f32_dpp v48, v48, v48 row_ror:8 row_mask:0xf bank_mask:0xf")
E("  v_add_f32_dpp v50, v50, v50 row_ror:8 row_mask:0xf bank_mask:0xf")
E("  v_add_f32_dpp v54, v54, v54 quad_perm:[2,3,0,1] row_mask:0xf bank_mask:0xf")
E("  v_add_f32_dpp v46, v46, v46 row_ror:8 row_mask:0xf bank_mask:0xf")
E("  v_add_f32_dpp v47, v47, v47 row_ror:8 row_mask:0xf bank_mask:0xf")
E("  v_add_f32_dpp v54, v54, v54 row_half_mirror row_mask:0xf bank_mask:0xf")
E("  v_permlane16_swap_b32 v48, v50")
E("  s_nop 0")
E("  v_permlane16_swap_b32 v46, v47")
E("  v_add_f32_dpp v54, v54, v54 row_mirror row_mask:0xf bank_mask:0xf")
E("  v_add_f32 v48, v48, v50")
E("  v_mov_b32 v53, v54")
E("  v_add_f32 v46, v46, v47")
E("  s_nop 1")
E("  v_permlane16_swap_b32 v54, v53")
E("  v_permlane32_swap_b32 v48, v46")
E("  s_nop 1")
E("  v_add_f32 v54, v54, v53         ; L")
E("  v_add_f32 v48, v48, v46")
E(f"  s_mov_b64 exec, {M1}")
E("  ds_write_b32 v13, v48")
E("  s_mov_b64 exec, -1")
E("  v_rcp_f32 v58, v54")
E("  s_waitcnt lgkmcnt(0)")
E("  s_barrier                        ; BarO")
for wv in range(4):
    E(f"  ds_read_b128 v[{40+4*wv}:{43+4*wv}], v4 offset:{LDS_O3+wv*128}")
E("  s_waitcnt lgkmcnt(0)")
for j in range(4):
    E(f"  v_add_f32 v{40+j}, v{40+j}, v{44+j}")
    E(f"  v_add_f32 v{48+j}, v{48+j}, v{52+j}")
for j in range(4):
    E(f"  v_add_f32 v{40+j}, v{40+j}, v{48+j}")
for j in range(4):
    E(f"  v_mul_f32 v{40+j}, v{40+j}, v58")
E("  v_cvt_pk_bf16_f32 v44, v40, v41")
E("  v_cvt_pk_bf16_f32 v45, v42, v43")
E("  v_lshlrev_b32 v10, 16, v44")
E("  v_and_b32 v11, 0xffff0000, v44")
E("  v_lshlrev_b32 v6, 16, v45")
E("  v_and_b32 v7, 0xffff0000, v45")
for i in range(4):
    for k in range(8):
        op = "v_mul_f32" if i == 0 else "v_fmac_f32"
        E(f"  {op} v{ACC+k}, v{XS[i]}, v{WU+8*i+k}")
E("  s_nop 0")
for k in range(8):
    E(f"  v_add_f32_dpp v{ACC+k}, v{ACC+k}, v{ACC+k} row_ror:8 row_mask:0xf bank_mask:0xf")
E("  s_nop 0")
for a_, b_ in ((0, 2), (1, 3), (4, 6), (5, 7)):
    E(f"  v_permlane16_swap_b32 v{ACC+a_}, v{ACC+b_}")
E("  s_nop 0")
for a_, b_ in ((0, 2), (1, 3), (4, 6), (5, 7)):
    E(f"  v_add_f32 v{ACC+a_}, v{ACC+a_}, v{ACC+b_}")
E("  s_nop 1")
E(f"  v_permlane32_swap_b32 v{ACC}, v{ACC+4}")
E(f"  v_permlane32_swap_b32 v{ACC+1}, v{ACC+5}")
E("  s_nop 1")
E(f"  v_add_f32 v{ACC}, v{ACC}, v{ACC+4}")
E(f"  v_add_f32 v{ACC+2}, v{ACC+1}, v{ACC+5}")
E(f"  v_mov_b32 v{ACC+1}, s{S_TAG}")
E(f"  v_mov_b32 v{ACC+3}, s{S_TAG}")
E(f"  s_mov_b64 exec, {M1}")
E(f"  buffer_store_dwordx4 v[{ACC}:{ACC+3}], v62, s[{SWS}:{SWS+3}], 0 offen sc1")
E("  s_mov_b64 exec, -1")
STAMP(5)
E(f"  s_cmp_lg_u32 s{S_WAVE}, 0")
E("  s_cbranch_scc1 L_end")
E(f"  s_lshl_b32 {T0}, s{S_G}, 7")
E(f"  s_lshl_b32 {T1}, s{S_IDX}, 2")
E(f"  s_add_u32 {T0}, {T0}, {T1}")
E(f"  v_mov_b32 v9, {T0}")
E(f"  s_mov_b32 s99, {POLL_MAX}")
E("L_poll3:")
E(f"  buffer_load_dwordx4 v[64:67], v1, s[{SWS}:{SWS+3}], 0 offen sc1")
E(f"  buffer_load_dwordx4 v[68:71], v1, s[{SWS}:{SWS+3}], 0 offen offset:1024 sc1")
E("  s_waitcnt vmcnt(0)")
tagcheck([65, 67, 69, 71], "L_poll3_done")
if P3S:
    E(f"  s_sleep {P3S}")
E("  s_sub_u32 s99, s99, 1")
E("  s_cmp_lg_u32 s99, 0")
E("  s_cbranch_scc1 L_poll3")
E("L_poll3_done:")
STAMP(6)
E("  v_add_f32 v40, v64, v68")
E("  v_add_f32 v42, v66, v70")
E("  s_nop 1")
E("  v_permlane16_swap_b32 v40, v42")
E("  s_nop 1")
E("  v_add_f32 v40, v40, v42")
E("  v_mov_b32 v42, v40")
E("  s_nop 1")
E("  v_permlane32_swap_b32 v40, v42")
E("  s_nop 1")
E("  v_add_f32 v40, v40, v42")
E("  s_nop 1")
E("  v_add_f32_dpp v40, v40, v40 quad_perm:[1,0,3,2] row_mask:0xf bank_mask:0xf")
E("  s_nop 1")
E("  v_add_f32_dpp v40, v40, v40 quad_perm:[2,3,0,1] row_mask:0xf bank_mask:0xf")
E("  s_nop 1")
E("  v_add_f32_dpp v40, v40, v40 row_half_mirror row_mask:0xf bank_mask:0xf")
E("  s_nop 1")
E("  v_add_f32_dpp v40, v40, v40 row_mirror row_mask:0xf bank_mask:0xf")
E("  s_nop 1")
E(f"  v_readlane_b32 {T0}, v40, 16")
E(f"  v_mov_b32 v42, {T0}")
E("  v_cvt_pk_bf16_f32 v40, v40, v42")
E("  s_mov_b64 exec, 1")
E(f"  buffer_store_dword v40, v9, s[{SOUT}:{SOUT+3}], 0 offen")
E("  s_cmp_lg_u32 s2, 0")
E("  s_cbranch_scc1 L_a_nononce")
E(f"  v_mov_b32 v40, s{S_TAG}")
E(f"  v_mov_b32 v9, {WS_NONCE}")
E(f"  buffer_store_dword v40, v9, s[{SWS}:{SWS+3}], 0 offen sc1")
E("L_a_nononce:")
E("  s_mov_b64 exec, -1")
E("  s_branch L_end")
E("L_bwave:")
kaddr()
E(f"  s_mov_b32 {T0}, {T3}")
E("  v_and_b32 v2, 15, v0")
E("  v_lshrrev_b32 v3, 4, v0")
E("  v_lshlrev_b32 v5, 1, v3")
E("  v_xor_b32 v5, v5, v2")
E("  v_lshlrev_b32 v6, 8, v3")
E("  v_lshl_add_u32 v7, v5, 4, v6")
E(f"  v_add_u32 v7, {T0}, v7")
E("  v_xor_b32 v5, 8, v5")
E("  v_lshl_add_u32 v8, v5, 4, v6")
E(f"  v_add_u32 v8, {T0}, v8")
E("  v_add_u32 v8, 0x400, v8")
E(f"  s_lshl_b32 {T2}, s{S_WAVE}, 13")
def vload(i):
    E(f"  s_add_u32 m0, {T2}, {i*1024}")
    E(f"  s_movk_i32 {T3}, {(i>>1)*2048}")
    E(f"  buffer_load_dwordx4 v{7 + (i&1)}, s[{SV}:{SV+3}], {T3} offen {KVF} lds")
if BD:
    E(f"  s_sleep {BD}")
for n in range(KPRE):
    kload(n)
for n in range(VPRE):
    vload(n)
if NP < 32:
    E(f"  s_cmp_ge_u32 s{S_IDX}, {NP}")
    E("  s_cbranch_scc1 L_b_go")
E("  s_barrier                        ; Bar1")
E("  s_barrier                        ; Bar2")
E("L_b_go:")
for n in range(KPRE, 8):
    kload(n)
for n in range(VPRE, 8):
    vload(n)
STAMP(8)
E("  v_and_b32 v9, 3, v0")
E("  v_lshlrev_b32 v9, 8, v9")
E("  v_lshl_add_u32 v9, v3, 4, v9")
E(f"  v_add_u32 v9, {LDS_Q}, v9")
E("  v_lshrrev_b32 v10, 2, v2")
E("  v_lshl_add_u32 v10, v3, 2, v10")
E("  v_and_b32 v11, 7, v10")
E("  v_lshlrev_b32 v11, 5, v11")
E("  v_lshl_add_u32 v11, v10, 8, v11")
E("  v_and_b32 v12, 3, v0")
E("  v_lshl_add_u32 v11, v12, 3, v11")
E(f"  v_add_u32 v11, {T2}, v11")
E("  v_and_b32 v13, 3, v0")
E("  v_lshlrev_b32 v14, 3, v13")
E("  v_lshlrev_b32 v13, 9, v13")
E("  v_lshl_add_u32 v13, v3, 4, v13")
E(f"  s_lshl_b32 {T1}, s{S_WAVE}, 11")
E(f"  s_add_u32 {T1}, {T1}, {LDS_OPART}")
E(f"  v_add_u32 v13, {T1}, v13")
E(f"  s_lshl_b32 {T1}, s{S_WAVE}, 5")
E(f"  s_add_u32 {T1}, {T1}, {LDS_MLP}")
E(f"  v_add_u32 v14, {T1}, v14")
E(f"  s_lshl_b32 {T1}, s{S_WAVE}, 9")
E(f"  s_add_u32 {T1}, {T1}, {LDS_OPART}")
E("  v_lshlrev_b32 v15, 3, v0")
E(f"  v_add_u32 v15, {T1}, v15")
E(f"  s_lshl_b32 {T1}, s{S_G}, 2")
E(f"  s_add_u32 {T1}, {T1}, s{S_WAVE}")
E(f"  s_lshl_b32 {T1}, {T1}, 5")
E(f"  s_add_u32 {T1}, {T1}, s{S_IDX}     ; (g*4+b)*32 + split")
E(f"  s_lshl_b32 {T3}, {T1}, 10")
E(f"  s_add_u32 {T3}, {T3}, {WS_AP}")
E("  v_lshlrev_b32 v116, 4, v0")
E(f"  v_add_u32 v116, {T3}, v116")
E(f"  s_lshl_b32 {T3}, {T1}, 4")
E(f"  s_add_u32 {T3}, {T3}, {WS_ML}")
E(f"  v_mov_b32 v117, {T3}")
E(f"  s_lshl_b32 {T1}, s{S_WAVE}, 3")
E(f"  s_add_u32 {T1}, {T1}, {LDS_MLP}")
E(f"  v_mov_b32 v118, {T1}")
E(f"  v_cmp_gt_u32 {M1}, 4, v2")
E("  s_waitcnt lgkmcnt(0)")
E(f"  s_add_u32 s{S_TAG}, s{S_TAG}, 1")
E("  s_mov_b32 s32, 0x3db504f3       ; 128^-0.5 (f32)")
E("  s_mov_b32 s33, 0x3db504f3")
E("  s_mov_b32 s34, 0x3fb8aa3b       ; log2(e)")
E("  s_waitcnt lgkmcnt(0)")
E("  s_barrier                        ; BarQ")
STAMP(2)
QF = 48
for ks in range(4):
    E(f"  ds_read_b128 v[{QF+4*ks}:{QF+4*ks+3}], v9 offset:{ks*64}")
E("  s_waitcnt vmcnt(8)")
STAMP(1)
SC = 64
for ks in range(4):
    E(f"  s_waitcnt lgkmcnt({3-ks})")
    for tt in range(2):
        r = KR + (tt * 4 + ks) * 4
        c = "0" if ks == 0 else f"v[{SC+4*tt}:{SC+4*tt+3}]"
        E(f"  v_mfma_f32_16x16x32_bf16 v[{SC+4*tt}:{SC+4*tt+3}], v[{r}:{r+3}], v[{QF+4*ks}:{QF+4*ks+3}], {c}")
E("  s_nop 7")
E("  s_nop 3")
for j in range(4):
    E(f"  v_cvt_pk_bf16_f32 v{72+j}, v{SC+2*j}, v{SC+2*j+1}")
for j in range(4):
    E(f"  v_lshlrev_b32 v{SC+2*j}, 16, v{72+j}")
    E(f"  v_and_b32 v{SC+2*j+1}, 0xffff0000, v{72+j}")
for j in range(4):
    E(f"  v_pk_mul_f32 v[{SC+2*j}:{SC+2*j+1}], v[{SC+2*j}:{SC+2*j+1}], s[32:33]")
for j in range(4):
    E(f"  v_cvt_pk_bf16_f32 v{72+j}, v{SC+2*j}, v{SC+2*j+1}")
for j in range(4):
    E(f"  v_lshlrev_b32 v{SC+2*j}, 16, v{72+j}")
    E(f"  v_and_b32 v{SC+2*j+1}, 0xffff0000, v{72+j}")
E(f"  v_max3_f32 v76, v{SC}, v{SC+1}, v{SC+2}")
E(f"  v_max3_f32 v77, v{SC+3}, v{SC+4}, v{SC+5}")
E(f"  v_max3_f32 v76, v76, v{SC+6}, v{SC+7}")
E("  v_max_f32 v76, v76, v77")
E("  v_mov_b32 v77, v76")
E("  s_nop 1")
E("  v_permlane16_swap_b32 v76, v77")
E("  s_nop 1")
E("  v_max_f32 v76, v76, v77")
E("  v_mov_b32 v77, v76")
E("  s_nop 1")
E("  v_permlane32_swap_b32 v76, v77")
E("  s_nop 1")
E("  v_max_f32 v76, v76, v77")
E("  v_mul_f32 v76, s34, v76")
for j in range(8):
    E(f"  v_fma_f32 v{SC+j}, v{SC+j}, s34, -v76")
for j in range(8):
    E(f"  v_exp_f32 v{SC+j}, v{SC+j}")
E("  s_nop 0")
for j in range(4):
    E(f"  v_cvt_pk_bf16_f32 v{72+j}, v{SC+2*j}, v{SC+2*j+1}")
E(f"  v_add_f32 v77, v{SC}, v{SC+1}")
E(f"  v_add_f32 v78, v{SC+2}, v{SC+3}")
E(f"  v_add_f32 v79, v{SC+4}, v{SC+5}")
E(f"  v_add_f32 v80, v{SC+6}, v{SC+7}")
E("  v_add_f32 v77, v77, v78")
E("  v_add_f32 v79, v79, v80")
E("  v_add_f32 v77, v77, v79")
E("  v_mov_b32 v78, v77")
E("  s_nop 1")
E("  v_permlane16_swap_b32 v77, v78")
E("  s_nop 1")
E("  v_add_f32 v77, v77, v78")
E("  v_mov_b32 v78, v77")
E("  s_nop 1")
E("  v_permlane32_swap_b32 v77, v78")
E("  s_nop 1")
E("  v_add_f32 v77, v77, v78         ; l_w")
E(f"  s_mov_b64 exec, {M1}")
E("  ds_write_b64 v14, v[76:77]")
E("  s_mov_b64 exec, -1")
for t in range(8):
    E(f"  v_xor_b32 v{48+t}, {t*32}, v11")
STAMP(3)
E("  s_waitcnt vmcnt(0)")
STAMP(4)
VF = 84
for t in range(8):
    E(f"  ds_read_b64_tr_b16 v[{VF+4*t}:{VF+4*t+1}], v{48+t}")
    E(f"  ds_read_b64_tr_b16 v[{VF+4*t+2}:{VF+4*t+3}], v{48+t} offset:4096")
OA = 16
for t in range(8):
    E(f"  s_waitcnt lgkmcnt({14-2*t})")
    E(f"  v_mfma_f32_16x16x32_bf16 v[{OA+4*t}:{OA+4*t+3}], v[{VF+4*t}:{VF+4*t+3}], v[72:75], 0")
E(f"  s_mov_b64 exec, {M1}")
E("  s_nop 7")
E("  s_nop 3")
for t in range(8):
    E(f"  ds_write_b128 v13, v[{OA+4*t}:{OA+4*t+3}] offset:{64*t}")
E("  s_mov_b64 exec, -1")
E("  s_waitcnt lgkmcnt(0)")
E("  s_barrier                        ; BarC")
STAMP(5)
for wv in range(4):
    E(f"  ds_read_b64 v[{48+2*wv}:{49+2*wv}], v118 offset:{wv*32}")
for wv in range(4):
    E(f"  ds_read_b64 v[{56+2*wv}:{57+2*wv}], v15 offset:{wv*2048}")
E(f"  v_mov_b32 v41, s{S_TAG}")
E(f"  v_mov_b32 v43, s{S_TAG}")
E(f"  v_mov_b32 v45, s{S_TAG}")
E(f"  v_mov_b32 v47, s{S_TAG}")
E("  s_waitcnt lgkmcnt(4)")
E("  v_max3_f32 v44, v48, v50, v52")
E("  v_max_f32 v44, v44, v54         ; M")
for wv in range(4):
    E(f"  v_sub_f32 v{33+wv}, v{48+2*wv}, v44")
for wv in range(4):
    E(f"  v_exp_f32 v{33+wv}, v{33+wv}")
E("  s_waitcnt lgkmcnt(0)")
E("  v_mul_f32 v40, v33, v56")
E("  v_mul_f32 v42, v33, v57")
for wv in range(1, 4):
    E(f"  v_fmac_f32 v40, v{33+wv}, v{56+2*wv}")
    E(f"  v_fmac_f32 v42, v{33+wv}, v{57+2*wv}")
E(f"  buffer_store_dwordx4 v[40:43], v116, s[{SWS}:{SWS+3}], 0 offen sc1")
E("  v_mul_f32 v46, v33, v49")
for wv in range(1, 4):
    E(f"  v_fmac_f32 v46, v{33+wv}, v{49+2*wv}")
E("  s_mov_b64 exec, 1")
E(f"  buffer_store_dwordx4 v[44:47], v117, s[{SWS}:{SWS+3}], 0 offen sc1")
E("  s_mov_b64 exec, -1")

E("L_end:")
if STAMPS:
    STAMP(15)
    E("  s_mov_b64 exec, -1")
    E(f"  s_lshl_b32 {T0}, s2, 3")
    E(f"  s_add_u32 {T0}, {T0}, s{S_W8}")
    E(f"  s_lshl_b32 {T0}, {T0}, 6")
    E(f"  s_add_u32 {T0}, {T0}, {WS_STAMP}")
    E("  v_lshlrev_b32 v9, 2, v0")
    E(f"  v_add_u32 v9, {T0}, v9")
    E("  s_mov_b64 exec, 0xffff")
    E(f"  buffer_store_dword v{VST}, v9, s[{SWS}:{SWS+3}], 0 offen")
E("L_end2:")
E("  s_endpgm")
E('.section .rodata,"a"')
E(".p2align 6")
E(".amdhsa_kernel standalone__sliding_block_cached__decode_kernel")
E("  .amdhsa_next_free_vgpr 128")
E("  .amdhsa_next_free_sgpr 102")
E("  .amdhsa_accum_offset 128")
E("  .amdhsa_group_segment_fixed_size 0")
E("  .amdhsa_kernarg_size 64")
E("  .amdhsa_user_sgpr_count 2")
E("  .amdhsa_user_sgpr_kernarg_segment_ptr 1")
E("  .amdhsa_system_sgpr_workgroup_id_x 1")
E(".end_amdhsa_kernel")
open(OUT, "w").write("\n".join(L) + "\n")
print("wrote", OUT, len(L), "lines")
```

```python
import sys, os
OUT = sys.argv[1] if len(sys.argv) > 1 else "standalone__sliding_block_cached__decode.s"
L = []
def E(s=""):
    L.append(s)
STAMPS = int(os.environ.get("STAMPS", "0"))
Q0 = int(os.environ.get("Q0", "40"))
QS = int(os.environ.get("QS", "1"))
WOLATE = int(os.environ.get("WOLATE", "0"))
BD = int(os.environ.get("BD", "0"))
NP = int(os.environ.get("NP", "32"))
KPRE = int(os.environ.get("KPRE", "5"))
VPRE = int(os.environ.get("VPRE", "0"))
QSLEEP = int(os.environ.get("QSLEEP", "12"))
P2S = int(os.environ.get("P2S", "1"))
P3S = int(os.environ.get("P3S", "0"))
MLF = int(os.environ.get("MLF", "1"))
ML1W = int(os.environ.get("ML1W", "0"))
PAD = int(os.environ.get("PAD", "1"))
M3 = int(os.environ.get("M3", "1"))
P3D = int(os.environ.get("P3D", "0"))
QP0 = int(os.environ.get("QP0", "8"))
SH = int(os.environ.get("SH", "4"))
NPOLL = int(os.environ.get("NPOLL", "64"))
CP = 512 // NP; LS = CP // 8; NLD = 2 * LS; NG = CP // 2; RPS = 64 // NG
LOG = {1:0, 2:1, 4:2, 8:3, 16:4, 32:5, 64:6}
NREP = min(8 * RPS, 32)
KVF = WQF = WOF = "nt"
VST = 127
def STAMP(i):
    if STAMPS:
        E("  s_memrealtime s[100:101]")
        E("  s_waitcnt lgkmcnt(0)")
        E(f"  v_writelane_b32 v{VST}, s100, {i}")

WS_NONCE = 0
WS_ML = 0x30000
WS_AP = 0x40000
WS_OP = 0x140000
WS_QP = 0x10000
WS_SIZE = 0x1c0000 if not STAMPS else 0x400000
WS_STAMP = 0x300000

LDS_V = 0
LDS_Q = 32768
QST = 320 if PAD else 256
HST = 576 if PAD else 512
LDS_OPART = 34048
LDS_P1 = 34048
LDS_MLP = 43264
LDS_O3 = 43520
LDS_ML3 = 44032
LDS_SIZE = 44288
POLL_MAX = 200000

hdr = open("standalone__sliding_block_cached__decode.s.ref").read().split("\n")
for ln in hdr:
    if ln.startswith("; @launch"):
        break
    E(ln)
E(f"; @launch grid=(256,1,1) block=(512,1,1) lds={LDS_SIZE}")
E('.amdgcn_target "amdgcn-amd-amdhsa--gfx950"')
E(".text")
E(".globl standalone__sliding_block_cached__decode_kernel")
E(".p2align 8")
E(".type standalone__sliding_block_cached__decode_kernel,@function")
E("standalone__sliding_block_cached__decode_kernel:")

SWS, SK, SV, SWO, SOUT, SX, SWQ = 4, 8, 12, 16, 20, 24, 28
S_TAG, S_WAVE, S_G, S_IDX = 90, 91, 92, 93
S_W8 = 3
M1, M2 = "s[94:95]", "s[96:97]"
T0, T1, T2, T3, T4, T5, T6 = ["s%d" % i for i in range(32, 39)]
def srd(base, ptr_lo, nbytes):
    E(f"  s_mov_b32 s{base}, s{ptr_lo}")
    E(f"  s_and_b32 s{base+1}, s{ptr_lo+1}, 0xffff")
    E(f"  s_mov_b32 s{base+2}, {nbytes}")
    E(f"  s_mov_b32 s{base+3}, 0x00020000")

E("  s_cmp_ge_u32 s2, 256")
E("  s_cbranch_scc1 L_end2")
E("  s_load_dwordx16 s[40:55], s[0:1], 0")
E("  v_lshrrev_b32 v1, 6, v0")
E("  v_and_b32 v0, 63, v0            ; lane")
E(f"  s_and_b32 s{S_G}, s2, 7")
E(f"  s_lshr_b32 s{S_IDX}, s2, 3")
E(f"  v_readfirstlane_b32 s{S_W8}, v1")
if STAMPS:
    E(f"  v_mov_b32 v{VST}, 0")
STAMP(0)
E("  s_waitcnt lgkmcnt(0)")
E(f"  s_load_dword s{S_TAG}, s[54:55], {WS_NONCE}")
E("  s_mov_b32 s88, s54")
E("  s_mov_b32 s89, s55")
srd(SX, 40, 1024)
srd(SK, 42, 67108864)
srd(SV, 44, 67108864)
srd(SWQ, 46, 4194304)
srd(SWO, 48, 4194304)
srd(SOUT, 50, 1024)
srd(SWS, 54, WS_SIZE)
E(f"  s_and_b32 s{S_WAVE}, s{S_W8}, 3")
def kaddr():
    E(f"  s_lshl_b32 {T3}, s{S_G}, 15")
    E(f"  s_add_u32 {T3}, {T3}, 28672")
    E(f"  s_lshl_b32 {T1}, s{S_IDX}, 7")
    E(f"  s_add_u32 {T3}, {T3}, {T1}")
    E(f"  s_lshl_b32 {T1}, s{S_WAVE}, 5")
    E(f"  s_add_u32 {T3}, {T3}, {T1}")
    E(f"  s_lshl_b32 {T3}, {T3}, 8")
    E("  v_and_b32 v122, 15, v0")
    E("  v_lshrrev_b32 v123, 4, v0")
    E("  v_lshlrev_b32 v122, 8, v122")
    E("  v_lshl_add_u32 v122, v123, 4, v122")
    E(f"  v_add_u32 v122, {T3}, v122")
    E(f"  s_movk_i32 {T1}, 0x1000")
KR = 16
def kload(n):
    tt, ks = n >> 2, n & 3
    so = "0" if tt == 0 else T1
    r = KR + (tt * 4 + ks) * 4
    E(f"  buffer_load_dwordx4 v[{r}:{r+3}], v122, s[{SK}:{SK+3}], {so} offen offset:{ks*64} {KVF}")
def tagcheck(regs, label_ok):
    E(f"  v_xor_b32 v56, s{S_TAG}, v{regs[0]}")
    for r in regs[1:]:
        E(f"  v_xor_b32 v57, s{S_TAG}, v{r}")
        E("  v_or_b32 v56, v56, v57")
    E("  v_cmp_ne_u32 vcc, 0, v56")
    E(f"  s_cbranch_vccz {label_ok}")

def qpoll(vt0, vt1, vt2):
    E(f"  s_lshl_b32 s98, s{S_G}, 11")
    E(f"  s_lshl_b32 s99, s{S_WAVE}, 9")
    E("  s_add_u32 s98, s98, s99")
    E(f"  s_add_u32 s98, s98, {WS_QP}")
    E(f"  s_lshr_b32 s99, s99, 1")
    E(f"  v_lshlrev_b32 v{vt0}, 2, v0")
    E(f"  v_add_u32 v{vt0}, s99, v{vt0}")
    E(f"  v_add_u32 v{vt0}, {LDS_Q}, v{vt0}")
    if NP < 32:
        E(f"  s_cmp_lt_u32 s{S_IDX}, {NP}")
        E(f"  s_cbranch_scc1 L_q_go")
        n = Q0
        while n > 0:
            E(f"  s_sleep {min(n, 127)}")
            n -= 127
    E("L_q_go:")
    E("  s_mov_b32 s99, 0")
    E("  s_mov_b32 s96, 0")
    E("L_q_loop:")
    for h in range(2):
        E(f"  s_bitcmp1_b32 s96, {h}")
        E(f"  s_cbranch_scc1 L_q_next{h}")
        for c in range(4):
            E(f"  s_add_u32 s97, s98, {h*256+c*64}")
            E(f"  s_load_dwordx16 s[{24+16*c}:{39+16*c}], s[88:89], s97 glc")
        E("  s_waitcnt lgkmcnt(0)")
        for c in range(4):
            b = 24 + 16 * c
            E(f"  s_xor_b32 vcc_lo, s{b+1}, s{S_TAG}")
            for j in range(1, 8):
                E(f"  s_xor_b32 vcc_hi, s{b+1+2*j}, s{S_TAG}")
                E("  s_or_b32 vcc_lo, vcc_lo, vcc_hi")
            E(f"  s_cbranch_scc1 L_q_next{h}")
        for j in range(32):
            E(f"  v_writelane_b32 v{vt1}, s{24+2*j}, {32*h+j}")
        E(f"  s_bitset1_b32 s96, {h}")
        E(f"L_q_next{h}:")
    E("  s_cmp_eq_u32 s96, 3")
    E("  s_cbranch_scc1 L_q_write")
    if QS:
        E(f"  s_sleep {QS}")
    E("  s_add_u32 s99, s99, 1")
    E(f"  s_cmp_lt_u32 s99, {NPOLL}")
    E("  s_cbranch_scc1 L_q_loop")
    E(f"  v_lshlrev_b32 v{vt2}, 3, v0")
    E(f"  v_add_u32 v{vt2}, s98, v{vt2}")
    E(f"  s_mov_b32 s99, {POLL_MAX}")
    E("L_q_fb:")
    E(f"  buffer_load_dwordx2 v[{vt1}:{vt1+1}], v{vt2}, s[{SWS}:{SWS+3}], 0 offen sc1")
    E("  s_waitcnt vmcnt(0)")
    E(f"  v_cmp_ne_u32 vcc, s{S_TAG}, v{vt1+1}")
    E("  s_cbranch_vccz L_q_write")
    E("  s_sleep 4")
    E("  s_sub_u32 s99, s99, 1")
    E("  s_cmp_lg_u32 s99, 0")
    E("  s_cbranch_scc1 L_q_fb")
    E("L_q_write:")
    E(f"  ds_write_b32 v{vt0}, v{vt1}")

E(f"  s_cmp_ge_u32 s{S_W8}, 4")
E("  s_cbranch_scc1 L_bwave")
E("L_awave:")
E("  s_setprio 3")
if NP < 32:
    E(f"  s_cmp_ge_u32 s{S_IDX}, {NP}")
    E("  s_cbranch_scc1 L_a_pre")
E(f"  v_lshrrev_b32 v112, {LOG[LS]}, v0")
E(f"  v_and_b32 v113, {LS-1}, v0")
E(f"  s_add_u32 {T0}, s{S_G}, 1")
E(f"  s_and_b32 {T0}, {T0}, 7")
E(f"  s_lshl_b32 {T0}, {T0}, 9")
E(f"  s_lshl_b32 {T1}, s{S_IDX}, {LOG[CP]}")
E(f"  s_add_u32 {T0}, {T0}, {T1}")
E(f"  s_lshl_b32 {T1}, s{S_WAVE}, 7")
E(f"  v_lshlrev_b32 v114, {LOG[NLD]}, v112")
E(f"  v_add_u32 v114, {T1}, v114          ; row0")
E("  v_lshlrev_b32 v115, 13, v114")
E("  v_lshl_add_u32 v115, v113, 4, v115")
E(f"  s_lshl_b32 {T2}, {T0}, 1")
E(f"  v_add_u32 v115, {T2}, v115")
E("  v_lshlrev_b32 v114, 1, v114")
WQ = 16
xl = {8: "dwordx4 v[120:123]", 4: "dwordx2 v[120:121]"}[NLD]
for i in range(NLD):
    if i == 0:
        so = "0"
    else:
        E(f"  s_mov_b32 {T1}, {i*8192}")
        so = T1
    E(f"  buffer_load_dwordx4 v[{WQ+4*i}:{WQ+4*i+3}], v115, s[{SWQ}:{SWQ+3}], {so} offen {WQF}")
    if i == 0:
        E(f"  buffer_load_{xl}, v114, s[{SX}:{SX+3}], 0 offen")
E("  v_lshrrev_b32 v116, 4, v0         ; R")
E("  v_lshl_add_u32 v116, v113, 3, v116")
E("  v_lshlrev_b32 v116, 2, v116")
E(f"  s_lshl_b32 {T1}, s{S_WAVE}, {LOG[CP]+2}")
E(f"  s_add_u32 {T1}, {T1}, {LDS_P1}")
E(f"  v_add_u32 v116, {T1}, v116")
E(f"  v_and_b32 v117, {NG-1}, v0")
E("  v_lshlrev_b32 v117, 3, v117         ; j*8")
E(f"  s_lshl_b32 {T1}, {T0}, 2")
E(f"  s_add_u32 {T1}, {T1}, {WS_QP}")
E(f"  v_add_u32 v118, {T1}, v117")
E(f"  v_and_b32 v119, {15 & ~(LS-1)}, v0")
E(f"  v_cmp_eq_u32 {M2}, 0, v119")
E("L_a_pre:")
E(f"  s_lshl_b32 {T0}, s{S_G}, 11")
E(f"  s_add_u32 {T0}, {T0}, {WS_QP}")
E("  v_lshlrev_b32 v60, 4, v0")
E(f"  v_add_u32 v60, {T0}, v60")
E("  v_lshrrev_b32 v61, 5, v0")
E(f"  v_mul_u32_u24 v61, {QST-256}, v61")
E("  v_lshl_add_u32 v61, v0, 3, v61")
E(f"  v_add_u32 v61, {LDS_Q}, v61")
E("  v_lshrrev_b32 v8, 4, v0         ; R")
E("  v_and_b32 v14, 7, v0")
E("  v_lshlrev_b32 v14, 3, v14       ; (l&7)*8")
E(f"  s_lshr_b32 {T0}, s{S_G}, 1")
E(f"  s_add_u32 {T0}, {T0}, 1")
E(f"  s_and_b32 {T0}, {T0}, 3")
E(f"  s_lshl_b32 {T0}, {T0}, 3")
E(f"  s_lshr_b32 {T2}, s{S_IDX}, 2")
E(f"  s_add_u32 {T2}, {T2}, {T0}         ; h3")
E(f"  s_and_b32 {T3}, s{S_IDX}, 3       ; quarter")
E(f"  s_and_b32 {T4}, s{S_G}, 1")
E(f"  s_xor_b32 {T4}, {T4}, 1")
E(f"  s_lshl_b32 {T5}, s{S_WAVE}, 1")
E(f"  s_add_u32 {T4}, {T4}, {T5}")
E("  v_and_b32 v3, 7, v0             ; c")
E("  v_lshrrev_b32 v2, 3, v0         ; rgrp")
E(f"  s_lshl_b32 {T0}, {T2}, 7")
E(f"  s_lshl_b32 {T1}, {T3}, 5")
E(f"  s_add_u32 {T0}, {T0}, {T1}")
E("  v_lshlrev_b32 v4, 2, v2")
E(f"  v_add_u32 v4, {T0}, v4           ; row0")
E("  v_lshlrev_b32 v5, 10, v4")
E("  v_lshl_add_u32 v5, v3, 4, v5")
E(f"  s_lshl_b32 {T1}, {T4}, 7")
E(f"  v_add_u32 v5, {T1}, v5")
E(f"  s_lshl_b32 {T0}, {T2}, 9")
E(f"  s_add_u32 {T0}, {T0}, {WS_ML}")
E("  v_and_b32 v9, 31, v0")
E("  v_lshlrev_b32 v9, 4, v9")
E(f"  v_add_u32 v9, {T0}, v9")
E(f"  s_lshl_b32 {T1}, s{S_WAVE}, 6")
E(f"  s_add_u32 {T1}, {T1}, {LDS_ML3}")
E("  v_lshlrev_b32 v12, 3, v2")
E(f"  v_add_u32 v12, {T1}, v12")
E("  v_and_b32 v59, 31, v0")
E("  v_lshlrev_b32 v59, 3, v59")
E(f"  v_add_u32 v59, {LDS_ML3}, v59")
E(f"  s_lshl_b32 {T0}, {T2}, 15")
E(f"  s_lshl_b32 {T1}, s{S_WAVE}, 13")
E(f"  s_add_u32 {T0}, {T0}, {T1}")
E(f"  s_lshl_b32 {T1}, {T3}, 8")
E(f"  s_add_u32 {T0}, {T0}, {T1}")
E(f"  s_add_u32 {T0}, {T0}, {WS_AP}")
E("  v_lshlrev_b32 v15, 10, v2")
E("  v_lshl_add_u32 v15, v14, 2, v15")
E(f"  v_add_u32 v15, {T0}, v15")
E("  v_lshlrev_b32 v13, 2, v8")
E("  v_lshl_add_u32 v13, v14, 1, v13")
E(f"  s_lshl_b32 {T1}, s{S_WAVE}, 7")
E(f"  s_add_u32 {T1}, {T1}, {LDS_O3}")
E(f"  v_add_u32 v13, {T1}, v13")
E("  v_and_b32 v4, 8, v0")
E(f"  v_cmp_eq_u32 {M1}, 0, v4")
E("  v_lshlrev_b32 v4, 4, v2")
E("  v_lshl_add_u32 v62, v3, 2, v8")
E("  v_lshlrev_b32 v62, 14, v62")
E(f"  s_lshl_b32 {T0}, {T4}, 11")
E(f"  s_lshr_b32 {T1}, s{S_G}, 1")
E(f"  s_lshl_b32 {T1}, {T1}, 5")
E(f"  s_add_u32 {T1}, {T1}, s{S_IDX}")
E(f"  s_lshl_b32 {T1}, {T1}, 4")
E(f"  s_add_u32 {T0}, {T0}, {T1}")
E(f"  s_add_u32 {T0}, {T0}, {WS_OP}")
E(f"  v_add_u32 v62, {T0}, v62")
E(f"  s_lshl_b32 {T0}, s2, 11")
E(f"  s_add_u32 {T0}, {T0}, {WS_OP}")
E("  v_lshlrev_b32 v1, 4, v0")
E(f"  v_add_u32 v1, {T0}, v1")

E("  s_waitcnt lgkmcnt(0)")
E(f"  s_add_u32 s{S_TAG}, s{S_TAG}, 1")
if NP < 32:
    E(f"  s_cmp_ge_u32 s{S_IDX}, {NP}")
    E("  s_cbranch_scc1 L_a_poll")
E(f"  s_waitcnt vmcnt({NLD-1})")
for k in range(NLD // 2):
    E(f"  v_lshlrev_b32 v{48+2*k}, 16, v{120+k}")
    E(f"  v_and_b32 v{49+2*k}, 0xffff0000, v{120+k}")
ACC = 64
for i in range(NLD):
    if i:
        E(f"  s_waitcnt vmcnt({NLD-1-i})")
    for k in range(4):
        w = WQ + 4 * i + k
        E(f"  v_lshlrev_b32 v{72+2*(k&1)}, 16, v{w}")
        E(f"  v_and_b32 v{73+2*(k&1)}, 0xffff0000, v{w}")
        op = "v_mul_f32" if i == 0 else "v_fmac_f32"
        E(f"  {op} v{ACC+2*k}, v{48+i}, v{72+2*(k&1)}")
        E(f"  {op} v{ACC+2*k+1}, v{48+i}, v{73+2*(k&1)}")
STAMP(1)
E("  s_nop 1")
steps = []
if LS <= 2: steps.append("quad_perm:[2,3,0,1]")
if LS <= 4: steps.append("row_ror:4")
steps.append("row_ror:8")
for stp in steps:
    for k in range(8):
        E(f"  v_add_f32_dpp v{ACC+k}, v{ACC+k}, v{ACC+k} {stp} row_mask:0xf bank_mask:0xf")
E("  s_nop 1")
for k in range(4):
    E(f"  v_permlane16_swap_b32 v{ACC+2*k}, v{ACC+2*k+1}")
E("  s_nop 1")
for k in range(4):
    E(f"  v_add_f32 v{ACC+2*k}, v{ACC+2*k}, v{ACC+2*k+1}")
E("  s_nop 1")
E(f"  v_permlane32_swap_b32 v{ACC}, v{ACC+2}")
E(f"  v_permlane32_swap_b32 v{ACC+4}, v{ACC+6}")
E("  s_nop 1")
E(f"  v_add_f32 v{ACC}, v{ACC}, v{ACC+2}")
E(f"  v_add_f32 v{ACC+4}, v{ACC+4}, v{ACC+6}")
E(f"  s_mov_b64 exec, {M2}")
E(f"  ds_write2_b32 v116, v{ACC}, v{ACC+4} offset0:0 offset1:4")
E("  s_mov_b64 exec, -1")
E("  s_waitcnt lgkmcnt(0)")
E("  s_barrier                        ; Bar1")
STAMP(9)
E(f"  s_cmp_lg_u32 s{S_WAVE}, 0")
E("  s_cbranch_scc1 L_p_nopub")
for wv in range(4):
    E(f"  ds_read_b64 v[{48+2*wv}:{49+2*wv}], v117 offset:{LDS_P1+wv*CP*4}")
E("  s_waitcnt lgkmcnt(0)")
for st in (1, 2):
    for wv in range(0, 4, 2 * st):
        E(f"  v_add_f32 v{48+2*wv}, v{48+2*wv}, v{48+2*(wv+st)}")
        E(f"  v_add_f32 v{49+2*wv}, v{49+2*wv}, v{49+2*(wv+st)}")
E("  v_cvt_pk_bf16_f32 v48, v48, v49")
E(f"  v_mov_b32 v49, s{S_TAG}")
E(f"  s_mov_b64 exec, {(1 << NG) - 1}")
E(f"  buffer_store_dwordx2 v[48:49], v118, s[{SWS}:{SWS+3}], 0 offen sc1")
E("  s_mov_b64 exec, -1")
E("L_p_nopub:")
E("  s_barrier")
STAMP(2)
E("L_a_poll:")
E(f"  s_cmp_lg_u32 s{S_WAVE}, 1")
E("  s_cbranch_scc1 L_a_noq")
def qissue(i):
    b = 64 + 8 * i
    E(f"  buffer_load_dwordx4 v[{b}:{b+3}], v60, s[{SWS}:{SWS+3}], 0 offen sc1")
    E(f"  buffer_load_dwordx4 v[{b+4}:{b+7}], v60, s[{SWS}:{SWS+3}], 0 offen offset:1024 sc1")
for i in range(4):
    E(f"  s_sleep {QSLEEP}")
    qissue(i)
E(f"  s_mov_b32 s99, {POLL_MAX}")
E("L_poll1:")
for i in range(4):
    b = 64 + 8 * i
    E("  s_waitcnt vmcnt(6)")
    tagcheck([b + 1, b + 3, b + 5, b + 7], f"L_q_ok{i}")
    qissue(i)
E("  s_sub_u32 s99, s99, 1")
E("  s_cmp_lg_u32 s99, 0")
E("  s_cbranch_scc1 L_poll1")
for i in range(4):
    b = 64 + 8 * i
    E(f"L_q_ok{i}:")
    E(f"  v_mov_b32 v{b+1}, v{b+2}")
    E(f"  v_mov_b32 v{b+5}, v{b+6}")
    E(f"  ds_write_b64 v61, v[{b}:{b+1}]")
    E(f"  ds_write_b64 v61, v[{b+4}:{b+5}] offset:{2*QST}")
    if i < 3:
        E("  s_branch L_q_done")
E("L_q_done:")
STAMP(7)
E("  s_waitcnt lgkmcnt(0)")
E("L_a_noq:")
E("  s_barrier                        ; BarQ")
XS = [10, 11, 6, 7]
ACC = 32
WO = 16
if WOLATE:
    E("  s_barrier                        ; BarC")
E(f"  buffer_load_dwordx4 v[{WO}:{WO+3}], v5, s[{SWO}:{SWO+3}], 0 offen {WOF}")
E(f"  buffer_load_dwordx4 v[{WO+4}:{WO+7}], v5, s[{SWO}:{SWO+3}], 0 offen offset:1024 {WOF}")
E(f"  buffer_load_dwordx4 v[{WO+8}:{WO+11}], v5, s[{SWO}:{SWO+3}], 0 offen offset:2048 {WOF}")
E(f"  buffer_load_dwordx4 v[{WO+12}:{WO+15}], v5, s[{SWO}:{SWO+3}], 0 offen offset:3072 {WOF}")
if not WOLATE:
    E("  s_barrier                        ; BarC")
STAMP(3)
def p2issue():
    E(f"  buffer_load_dwordx4 v[104:107], v15, s[{SWS}:{SWS+3}], 0 offen sc1")
    E(f"  buffer_load_dwordx4 v[108:111], v15, s[{SWS}:{SWS+3}], 0 offen offset:16 sc1")
E("  s_waitcnt vmcnt(0)")
WU = 64
for i in range(4):
    for k in range(4):
        w = WO + 4 * i + k
        E(f"  v_lshlrev_b32 v{WU+8*i+2*k}, 16, v{w}")
        E(f"  v_and_b32 v{WU+8*i+2*k+1}, 0xffff0000, v{w}")
E(f"  s_mov_b32 s99, {POLL_MAX}")
E(f"  s_cmp_lg_u32 s{S_WAVE}, 0")
E("  s_cbranch_scc1 L_ml_wait")
E("L_poll2a:")
E(f"  buffer_load_dwordx4 v[96:99], v9, s[{SWS}:{SWS+3}], 0 offen sc1")
E("  s_waitcnt vmcnt(0)")
tagcheck([97, 99], "L_poll2a_done")
if P2S:
    E(f"  s_sleep {P2S}")
E("  s_sub_u32 s99, s99, 1")
E("  s_cmp_lg_u32 s99, 0")
E("  s_cbranch_scc1 L_poll2a")
E("L_poll2a_done:")
E("  ds_write2_b32 v59, v96, v98 offset0:0 offset1:1")
E(f"  s_mov_b32 s99, {POLL_MAX}")
E("  s_waitcnt lgkmcnt(0)")
E("L_ml_wait:")
E("  s_barrier                        ; BarM")
p2issue()
E("  ds_read_b64 v[96:97], v59")
E("  ds_read_b32 v100, v12")
E("  s_waitcnt lgkmcnt(0)")
E("  v_max_f32_dpp v52, v96, v96 quad_perm:[1,0,3,2] row_mask:0xf bank_mask:0xf")
E("  s_nop 1")
E("  v_max_f32_dpp v52, v52, v52 quad_perm:[2,3,0,1] row_mask:0xf bank_mask:0xf")
E("  s_nop 1")
E("  v_max_f32_dpp v52, v52, v52 row_half_mirror row_mask:0xf bank_mask:0xf")
E("  s_nop 1")
E("  v_max_f32_dpp v52, v52, v52 row_mirror row_mask:0xf bank_mask:0xf")
E("  s_nop 0")
E("  v_mov_b32 v53, v52")
E("  s_nop 1")
E("  v_permlane16_swap_b32 v52, v53")
E("  s_nop 1")
E("  v_max_f32 v52, v52, v53         ; M")
E("  v_sub_f32 v54, v96, v52")
E("  v_sub_f32 v55, v100, v52")
E("  v_exp_f32 v54, v54")
E("  v_exp_f32 v55, v55")
E("  s_nop 0")
E("  v_mul_f32 v54, v54, v97")
E("  s_nop 1")
E("  v_add_f32_dpp v54, v54, v54 quad_perm:[1,0,3,2] row_mask:0xf bank_mask:0xf")
E("  s_nop 1")
E("  v_add_f32_dpp v54, v54, v54 quad_perm:[2,3,0,1] row_mask:0xf bank_mask:0xf")
E("  s_nop 1")
E("  v_add_f32_dpp v54, v54, v54 row_half_mirror row_mask:0xf bank_mask:0xf")
E("  s_nop 1")
E("  v_add_f32_dpp v54, v54, v54 row_mirror row_mask:0xf bank_mask:0xf")
E("  s_nop 0")
E("  v_mov_b32 v53, v54")
E("  s_nop 1")
E("  v_permlane16_swap_b32 v54, v53")
E("  s_nop 1")
E("  v_add_f32 v54, v54, v53         ; L")
E("  v_rcp_f32 v58, v54")
E("L_poll2:")
E("  s_waitcnt vmcnt(0)")
tagcheck([105, 107, 109, 111], "L_poll2_done")
p2issue()
E("  s_sub_u32 s99, s99, 1")
E("  s_cmp_lg_u32 s99, 0")
E("  s_cbranch_scc1 L_poll2")
E("  s_waitcnt vmcnt(0)")
E("L_poll2_done:")
STAMP(4)
E("  v_mul_f32 v48, v55, v104")
E("  v_mul_f32 v50, v55, v106")
E("  v_mul_f32 v46, v55, v108")
E("  v_mul_f32 v47, v55, v110")
E("  v_add_f32_dpp v48, v48, v48 row_ror:8 row_mask:0xf bank_mask:0xf")
E("  v_add_f32_dpp v50, v50, v50 row_ror:8 row_mask:0xf bank_mask:0xf")
E("  v_add_f32_dpp v46, v46, v46 row_ror:8 row_mask:0xf bank_mask:0xf")
E("  v_add_f32_dpp v47, v47, v47 row_ror:8 row_mask:0xf bank_mask:0xf")
E("  s_nop 0")
E("  v_permlane16_swap_b32 v48, v50")
E("  v_permlane16_swap_b32 v46, v47")
E("  s_nop 1")
E("  v_add_f32 v48, v48, v50")
E("  v_add_f32 v46, v46, v47")
E("  s_nop 1")
E("  v_permlane32_swap_b32 v48, v46")
E("  s_nop 1")
E("  v_add_f32 v48, v48, v46")
E(f"  s_mov_b64 exec, {M1}")
E("  ds_write_b32 v13, v48")
E("  s_mov_b64 exec, -1")
E("  s_waitcnt lgkmcnt(0)")
E("  s_barrier                        ; BarO")
for wv in range(4):
    E(f"  ds_read_b128 v[{40+4*wv}:{43+4*wv}], v4 offset:{LDS_O3+wv*128}")
E("  s_waitcnt lgkmcnt(0)")
for j in range(4):
    E(f"  v_add_f32 v{40+j}, v{40+j}, v{44+j}")
    E(f"  v_add_f32 v{48+j}, v{48+j}, v{52+j}")
for j in range(4):
    E(f"  v_add_f32 v{40+j}, v{40+j}, v{48+j}")
for j in range(4):
    E(f"  v_mul_f32 v{40+j}, v{40+j}, v58")
E("  v_cvt_pk_bf16_f32 v44, v40, v41")
E("  v_cvt_pk_bf16_f32 v45, v42, v43")
E("  v_lshlrev_b32 v10, 16, v44")
E("  v_and_b32 v11, 0xffff0000, v44")
E("  v_lshlrev_b32 v6, 16, v45")
E("  v_and_b32 v7, 0xffff0000, v45")
for i in range(4):
    for k in range(8):
        op = "v_mul_f32" if i == 0 else "v_fmac_f32"
        E(f"  {op} v{ACC+k}, v{XS[i]}, v{WU+8*i+k}")
E("  s_nop 0")
for k in range(8):
    E(f"  v_add_f32_dpp v{ACC+k}, v{ACC+k}, v{ACC+k} row_ror:8 row_mask:0xf bank_mask:0xf")
E("  s_nop 0")
for a_, b_ in ((0, 2), (1, 3), (4, 6), (5, 7)):
    E(f"  v_permlane16_swap_b32 v{ACC+a_}, v{ACC+b_}")
E("  s_nop 0")
for a_, b_ in ((0, 2), (1, 3), (4, 6), (5, 7)):
    E(f"  v_add_f32 v{ACC+a_}, v{ACC+a_}, v{ACC+b_}")
E("  s_nop 1")
E(f"  v_permlane32_swap_b32 v{ACC}, v{ACC+4}")
E(f"  v_permlane32_swap_b32 v{ACC+1}, v{ACC+5}")
E("  s_nop 1")
E(f"  v_add_f32 v{ACC}, v{ACC}, v{ACC+4}")
E(f"  v_add_f32 v{ACC+2}, v{ACC+1}, v{ACC+5}")
E(f"  v_mov_b32 v{ACC+1}, s{S_TAG}")
E(f"  v_mov_b32 v{ACC+3}, s{S_TAG}")
E(f"  s_mov_b64 exec, {M1}")
E(f"  buffer_store_dwordx4 v[{ACC}:{ACC+3}], v62, s[{SWS}:{SWS+3}], 0 offen sc1")
E("  s_mov_b64 exec, -1")
STAMP(5)
E(f"  s_cmp_lg_u32 s{S_WAVE}, 0")
E("  s_cbranch_scc1 L_end")
E(f"  s_lshl_b32 {T0}, s{S_G}, 7")
E(f"  s_lshl_b32 {T1}, s{S_IDX}, 2")
E(f"  s_add_u32 {T0}, {T0}, {T1}")
E(f"  v_mov_b32 v9, {T0}")
E(f"  s_mov_b32 s99, {POLL_MAX}")
if P3D:
    E(f"  s_sleep {P3D}")
if M3:
    E("  s_mov_b64 s[32:33], -1")
    E("  s_mov_b64 s[34:35], -1")
    E("L_poll3:")
    E("  s_mov_b64 exec, s[32:33]")
    E(f"  buffer_load_dwordx4 v[64:67], v1, s[{SWS}:{SWS+3}], 0 offen sc1")
    E("  s_mov_b64 exec, s[34:35]")
    E(f"  buffer_load_dwordx4 v[68:71], v1, s[{SWS}:{SWS+3}], 0 offen offset:1024 sc1")
    E("  s_mov_b64 exec, -1")
    E("  s_waitcnt vmcnt(0)")
    E(f"  v_xor_b32 v56, s{S_TAG}, v65")
    E(f"  v_xor_b32 v57, s{S_TAG}, v67")
    E("  v_or_b32 v56, v56, v57")
    E("  v_cmp_ne_u32 s[32:33], 0, v56")
    E(f"  v_xor_b32 v56, s{S_TAG}, v69")
    E(f"  v_xor_b32 v57, s{S_TAG}, v71")
    E("  v_or_b32 v56, v56, v57")
    E("  v_cmp_ne_u32 s[34:35], 0, v56")
    E("  s_nop 3")
    E("  s_or_b64 s[36:37], s[32:33], s[34:35]")
    E("  s_cbranch_scc0 L_poll3_done")
    if P3S:
        E(f"  s_sleep {P3S}")
    E("  s_sub_u32 s99, s99, 1")
    E("  s_cmp_lg_u32 s99, 0")
    E("  s_cbranch_scc1 L_poll3")
else:
    E("L_poll3:")
    E(f"  buffer_load_dwordx4 v[64:67], v1, s[{SWS}:{SWS+3}], 0 offen sc1")
    E(f"  buffer_load_dwordx4 v[68:71], v1, s[{SWS}:{SWS+3}], 0 offen offset:1024 sc1")
    E("  s_waitcnt vmcnt(0)")
    tagcheck([65, 67, 69, 71], "L_poll3_done")
    if P3S:
        E(f"  s_sleep {P3S}")
    E("  s_sub_u32 s99, s99, 1")
    E("  s_cmp_lg_u32 s99, 0")
    E("  s_cbranch_scc1 L_poll3")
E("L_poll3_done:")
STAMP(6)
E("  v_add_f32 v40, v64, v68")
E("  v_add_f32 v42, v66, v70")
E("  s_nop 1")
E("  v_permlane16_swap_b32 v40, v42")
E("  s_nop 1")
E("  v_add_f32 v40, v40, v42")
E("  v_mov_b32 v42, v40")
E("  s_nop 1")
E("  v_permlane32_swap_b32 v40, v42")
E("  s_nop 1")
E("  v_add_f32 v40, v40, v42")
E("  s_nop 1")
E("  v_add_f32_dpp v40, v40, v40 quad_perm:[1,0,3,2] row_mask:0xf bank_mask:0xf")
E("  s_nop 1")
E("  v_add_f32_dpp v40, v40, v40 quad_perm:[2,3,0,1] row_mask:0xf bank_mask:0xf")
E("  s_nop 1")
E("  v_add_f32_dpp v40, v40, v40 row_half_mirror row_mask:0xf bank_mask:0xf")
E("  s_nop 1")
E("  v_add_f32_dpp v40, v40, v40 row_mirror row_mask:0xf bank_mask:0xf")
E("  s_nop 1")
E(f"  v_readlane_b32 {T0}, v40, 16")
E(f"  v_mov_b32 v42, {T0}")
E("  v_cvt_pk_bf16_f32 v40, v40, v42")
E("  s_mov_b64 exec, 1")
E(f"  buffer_store_dword v40, v9, s[{SOUT}:{SOUT+3}], 0 offen")
E("  s_cmp_lg_u32 s2, 0")
E("  s_cbranch_scc1 L_a_nononce")
E(f"  v_mov_b32 v40, s{S_TAG}")
E(f"  v_mov_b32 v9, {WS_NONCE}")
E(f"  buffer_store_dword v40, v9, s[{SWS}:{SWS+3}], 0 offen sc1")
E("L_a_nononce:")
E("  s_mov_b64 exec, -1")
E("  s_branch L_end")
E("L_bwave:")
kaddr()
E(f"  s_mov_b32 {T0}, {T3}")
E("  v_and_b32 v2, 15, v0")
E("  v_lshrrev_b32 v3, 4, v0")
E("  v_lshlrev_b32 v5, 1, v3")
E("  v_xor_b32 v5, v5, v2")
E("  v_lshlrev_b32 v6, 8, v3")
E("  v_lshl_add_u32 v7, v5, 4, v6")
E(f"  v_add_u32 v7, {T0}, v7")
E("  v_xor_b32 v5, 8, v5")
E("  v_lshl_add_u32 v8, v5, 4, v6")
E(f"  v_add_u32 v8, {T0}, v8")
E("  v_add_u32 v8, 0x400, v8")
E(f"  s_lshl_b32 {T2}, s{S_WAVE}, 13")
def vload(i):
    E(f"  s_add_u32 m0, {T2}, {i*1024}")
    E(f"  s_movk_i32 {T3}, {(i>>1)*2048}")
    E(f"  buffer_load_dwordx4 v{7 + (i&1)}, s[{SV}:{SV+3}], {T3} offen {KVF} lds")
if BD:
    E(f"  s_sleep {BD}")
for n in range(KPRE):
    kload(n)
for n in range(VPRE):
    vload(n)
if NP < 32:
    E(f"  s_cmp_ge_u32 s{S_IDX}, {NP}")
    E("  s_cbranch_scc1 L_b_go")
E("  s_barrier                        ; Bar1")
E("  s_barrier                        ; Bar2")
E("L_b_go:")
for n in range(KPRE, 8):
    kload(n)
for n in range(VPRE, 8):
    vload(n)
STAMP(8)
E("  v_and_b32 v9, 3, v0")
E(f"  v_mul_u32_u24 v9, {QST}, v9")
E("  v_lshl_add_u32 v9, v3, 4, v9")
E(f"  v_add_u32 v9, {LDS_Q}, v9")
E("  v_lshrrev_b32 v10, 2, v2")
E("  v_lshl_add_u32 v10, v3, 2, v10")
E("  v_and_b32 v11, 7, v10")
E("  v_lshlrev_b32 v11, 5, v11")
E("  v_lshl_add_u32 v11, v10, 8, v11")
E("  v_and_b32 v12, 3, v0")
E("  v_lshl_add_u32 v11, v12, 3, v11")
E(f"  v_add_u32 v11, {T2}, v11")
E("  v_and_b32 v13, 3, v0")
E("  v_lshlrev_b32 v14, 3, v13")
E(f"  v_mul_u32_u24 v13, {HST}, v13")
E("  v_lshl_add_u32 v13, v3, 4, v13")
E(f"  s_mul_i32 {T1}, s{S_WAVE}, {4*HST}")
E(f"  s_add_u32 {T1}, {T1}, {LDS_OPART}")
E(f"  v_add_u32 v13, {T1}, v13")
E(f"  s_lshl_b32 {T1}, s{S_WAVE}, 5")
E(f"  s_add_u32 {T1}, {T1}, {LDS_MLP}")
E(f"  v_add_u32 v14, {T1}, v14")
E(f"  s_mul_i32 {T1}, s{S_WAVE}, {HST}")
E(f"  s_add_u32 {T1}, {T1}, {LDS_OPART}")
E("  v_lshlrev_b32 v15, 3, v0")
E(f"  v_add_u32 v15, {T1}, v15")
E(f"  s_lshl_b32 {T1}, s{S_G}, 2")
E(f"  s_add_u32 {T1}, {T1}, s{S_WAVE}")
E(f"  s_lshl_b32 {T1}, {T1}, 5")
E(f"  s_add_u32 {T1}, {T1}, s{S_IDX}     ; (g*4+b)*32 + split")
E(f"  s_lshl_b32 {T3}, {T1}, 10")
E(f"  s_add_u32 {T3}, {T3}, {WS_AP}")
E("  v_lshlrev_b32 v116, 4, v0")
E(f"  v_add_u32 v116, {T3}, v116")
E(f"  s_lshl_b32 {T3}, {T1}, 4")
E(f"  s_add_u32 {T3}, {T3}, {WS_ML}")
E(f"  v_mov_b32 v117, {T3}")
E(f"  s_lshl_b32 {T1}, s{S_WAVE}, 3")
E(f"  s_add_u32 {T1}, {T1}, {LDS_MLP}")
E(f"  v_mov_b32 v118, {T1}")
E(f"  v_cmp_gt_u32 {M1}, 4, v2")
E("  s_waitcnt lgkmcnt(0)")
E(f"  s_add_u32 s{S_TAG}, s{S_TAG}, 1")
E("  s_mov_b32 s32, 0x3db504f3       ; 128^-0.5 (f32)")
E("  s_mov_b32 s33, 0x3db504f3")
E("  s_mov_b32 s34, 0x3fb8aa3b       ; log2(e)")
E("  s_waitcnt lgkmcnt(0)")
E("  s_barrier                        ; BarQ")
STAMP(2)
QF = 48
for ks in range(4):
    E(f"  ds_read_b128 v[{QF+4*ks}:{QF+4*ks+3}], v9 offset:{ks*64}")
E("  s_waitcnt vmcnt(8)")
STAMP(1)
SC = 64
for ks in range(4):
    E(f"  s_waitcnt lgkmcnt({3-ks})")
    for tt in range(2):
        r = KR + (tt * 4 + ks) * 4
        c = "0" if ks == 0 else f"v[{SC+4*tt}:{SC+4*tt+3}]"
        E(f"  v_mfma_f32_16x16x32_bf16 v[{SC+4*tt}:{SC+4*tt+3}], v[{r}:{r+3}], v[{QF+4*ks}:{QF+4*ks+3}], {c}")
E("  s_nop 7")
E("  s_nop 3")
for j in range(4):
    E(f"  v_cvt_pk_bf16_f32 v{72+j}, v{SC+2*j}, v{SC+2*j+1}")
for j in range(4):
    E(f"  v_lshlrev_b32 v{SC+2*j}, 16, v{72+j}")
    E(f"  v_and_b32 v{SC+2*j+1}, 0xffff0000, v{72+j}")
for j in range(4):
    E(f"  v_pk_mul_f32 v[{SC+2*j}:{SC+2*j+1}], v[{SC+2*j}:{SC+2*j+1}], s[32:33]")
for j in range(4):
    E(f"  v_cvt_pk_bf16_f32 v{72+j}, v{SC+2*j}, v{SC+2*j+1}")
for j in range(4):
    E(f"  v_lshlrev_b32 v{SC+2*j}, 16, v{72+j}")
    E(f"  v_and_b32 v{SC+2*j+1}, 0xffff0000, v{72+j}")
E(f"  v_max3_f32 v76, v{SC}, v{SC+1}, v{SC+2}")
E(f"  v_max3_f32 v77, v{SC+3}, v{SC+4}, v{SC+5}")
E(f"  v_max3_f32 v76, v76, v{SC+6}, v{SC+7}")
E("  v_max_f32 v76, v76, v77")
E("  v_mov_b32 v77, v76")
E("  s_nop 1")
E("  v_permlane16_swap_b32 v76, v77")
E("  s_nop 1")
E("  v_max_f32 v76, v76, v77")
E("  v_mov_b32 v77, v76")
E("  s_nop 1")
E("  v_permlane32_swap_b32 v76, v77")
E("  s_nop 1")
E("  v_max_f32 v76, v76, v77")
E("  v_mul_f32 v76, s34, v76")
for j in range(8):
    E(f"  v_fma_f32 v{SC+j}, v{SC+j}, s34, -v76")
for j in range(8):
    E(f"  v_exp_f32 v{SC+j}, v{SC+j}")
E("  s_nop 0")
for j in range(4):
    E(f"  v_cvt_pk_bf16_f32 v{72+j}, v{SC+2*j}, v{SC+2*j+1}")
E(f"  v_add_f32 v77, v{SC}, v{SC+1}")
E(f"  v_add_f32 v78, v{SC+2}, v{SC+3}")
E(f"  v_add_f32 v79, v{SC+4}, v{SC+5}")
E(f"  v_add_f32 v80, v{SC+6}, v{SC+7}")
E("  v_add_f32 v77, v77, v78")
E("  v_add_f32 v79, v79, v80")
E("  v_add_f32 v77, v77, v79")
E("  v_mov_b32 v78, v77")
E("  s_nop 1")
E("  v_permlane16_swap_b32 v77, v78")
E("  s_nop 1")
E("  v_add_f32 v77, v77, v78")
E("  v_mov_b32 v78, v77")
E("  s_nop 1")
E("  v_permlane32_swap_b32 v77, v78")
E("  s_nop 1")
E("  v_add_f32 v77, v77, v78         ; l_w")
E(f"  s_mov_b64 exec, {M1}")
E("  ds_write_b64 v14, v[76:77]")
E("  s_mov_b64 exec, -1")
for t in range(8):
    E(f"  v_xor_b32 v{48+t}, {t*32}, v11")
STAMP(3)
E("  s_waitcnt vmcnt(0)")
STAMP(4)
VF = 84
for t in range(8):
    E(f"  ds_read_b64_tr_b16 v[{VF+4*t}:{VF+4*t+1}], v{48+t}")
    E(f"  ds_read_b64_tr_b16 v[{VF+4*t+2}:{VF+4*t+3}], v{48+t} offset:4096")
OA = 16
for t in range(8):
    E(f"  s_waitcnt lgkmcnt({14-2*t})")
    E(f"  v_mfma_f32_16x16x32_bf16 v[{OA+4*t}:{OA+4*t+3}], v[{VF+4*t}:{VF+4*t+3}], v[72:75], 0")
E(f"  s_mov_b64 exec, {M1}")
E("  s_nop 7")
E("  s_nop 3")
for t in range(8):
    E(f"  ds_write_b128 v13, v[{OA+4*t}:{OA+4*t+3}] offset:{64*t}")
E("  s_mov_b64 exec, -1")
E("  s_waitcnt lgkmcnt(0)")
E("  s_barrier                        ; BarC")
STAMP(5)
for wv in range(4):
    E(f"  ds_read_b64 v[{48+2*wv}:{49+2*wv}], v118 offset:{wv*32}")
for wv in range(4):
    E(f"  ds_read_b64 v[{56+2*wv}:{57+2*wv}], v15 offset:{wv*4*HST}")
E(f"  v_mov_b32 v41, s{S_TAG}")
E(f"  v_mov_b32 v43, s{S_TAG}")
E(f"  v_mov_b32 v45, s{S_TAG}")
E(f"  v_mov_b32 v47, s{S_TAG}")
E("  s_waitcnt lgkmcnt(4)")
E("  v_max3_f32 v44, v48, v50, v52")
E("  v_max_f32 v44, v44, v54         ; M")
for wv in range(4):
    E(f"  v_sub_f32 v{33+wv}, v{48+2*wv}, v44")
for wv in range(4):
    E(f"  v_exp_f32 v{33+wv}, v{33+wv}")
E("  s_waitcnt lgkmcnt(0)")
E("  v_mul_f32 v40, v33, v56")
E("  v_mul_f32 v42, v33, v57")
for wv in range(1, 4):
    E(f"  v_fmac_f32 v40, v{33+wv}, v{56+2*wv}")
    E(f"  v_fmac_f32 v42, v{33+wv}, v{57+2*wv}")
E(f"  buffer_store_dwordx4 v[40:43], v116, s[{SWS}:{SWS+3}], 0 offen sc1")
E("  v_mul_f32 v46, v33, v49")
for wv in range(1, 4):
    E(f"  v_fmac_f32 v46, v{33+wv}, v{49+2*wv}")
E("  s_mov_b64 exec, 1")
E(f"  buffer_store_dwordx4 v[44:47], v117, s[{SWS}:{SWS+3}], 0 offen sc1")
E("  s_mov_b64 exec, -1")

E("L_end:")
if STAMPS:
    STAMP(15)
    E("  s_mov_b64 exec, -1")
    E(f"  s_lshl_b32 {T0}, s2, 3")
    E(f"  s_add_u32 {T0}, {T0}, s{S_W8}")
    E(f"  s_lshl_b32 {T0}, {T0}, 6")
    E(f"  s_add_u32 {T0}, {T0}, {WS_STAMP}")
    E("  v_lshlrev_b32 v9, 2, v0")
    E(f"  v_add_u32 v9, {T0}, v9")
    E("  s_mov_b64 exec, 0xffff")
    E(f"  buffer_store_dword v{VST}, v9, s[{SWS}:{SWS+3}], 0 offen")
E("L_end2:")
E("  s_endpgm")
E('.section .rodata,"a"')
E(".p2align 6")
E(".amdhsa_kernel standalone__sliding_block_cached__decode_kernel")
E("  .amdhsa_next_free_vgpr 128")
E("  .amdhsa_next_free_sgpr 102")
E("  .amdhsa_accum_offset 128")
E("  .amdhsa_group_segment_fixed_size 0")
E("  .amdhsa_kernarg_size 64")
E("  .amdhsa_user_sgpr_count 2")
E("  .amdhsa_user_sgpr_kernarg_segment_ptr 1")
E("  .amdhsa_system_sgpr_workgroup_id_x 1")
E(".end_amdhsa_kernel")
open(OUT, "w").write("\n".join(L) + "\n")
print("wrote", OUT, len(L), "lines")
```

```python
import sys, os
OUT = sys.argv[1] if len(sys.argv) > 1 else "standalone__sliding_block_cached__decode.s"
L = []
def E(s=""):
    L.append(s)
STAMPS = int(os.environ.get("STAMPS", "0"))
Q0 = int(os.environ.get("Q0", "40"))
QS = int(os.environ.get("QS", "1"))
WOLATE = int(os.environ.get("WOLATE", "0"))
BD = int(os.environ.get("BD", "0"))
NP = int(os.environ.get("NP", "32"))
KPRE = int(os.environ.get("KPRE", "5"))
VPRE = int(os.environ.get("VPRE", "0"))
QSLEEP = int(os.environ.get("QSLEEP", "12"))
P2S = int(os.environ.get("P2S", "1"))
P3S = int(os.environ.get("P3S", "0"))
MLF = int(os.environ.get("MLF", "1"))
ML1W = int(os.environ.get("ML1W", "0"))
PAD = int(os.environ.get("PAD", "1"))
M3 = int(os.environ.get("M3", "1"))
P3D = int(os.environ.get("P3D", "0"))
APD = int(os.environ.get("APD", "0"))
QP0 = int(os.environ.get("QP0", "8"))
SH = int(os.environ.get("SH", "4"))
NPOLL = int(os.environ.get("NPOLL", "64"))
CP = 512 // NP; LS = CP // 8; NLD = 2 * LS; NG = CP // 2; RPS = 64 // NG
LOG = {1:0, 2:1, 4:2, 8:3, 16:4, 32:5, 64:6}
NREP = min(8 * RPS, 32)
KVF = WQF = WOF = "nt"
VST = 127
def STAMP(i):
    if STAMPS:
        E("  s_memrealtime s[100:101]")
        E("  s_waitcnt lgkmcnt(0)")
        E(f"  v_writelane_b32 v{VST}, s100, {i}")

WS_NONCE = 0
WS_ML = 0x30000
WS_AP = 0x40000
WS_OP = 0x140000
WS_QP = 0x10000
WS_SIZE = 0x1c0000 if not STAMPS else 0x400000
WS_STAMP = 0x300000

LDS_V = 0
LDS_Q = 32768
QST = 320 if PAD else 256
HST = 576 if PAD else 512
LDS_OPART = 34048
LDS_P1 = 34048
LDS_MLP = 43264
LDS_O3 = 43520
LDS_ML3 = 44032
LDS_SIZE = 44288
POLL_MAX = 200000

hdr = open("standalone__sliding_block_cached__decode.s.ref").read().split("\n")
for ln in hdr:
    if ln.startswith("; @launch"):
        break
    E(ln)
E(f"; @launch grid=(256,1,1) block=(512,1,1) lds={LDS_SIZE}")
E('.amdgcn_target "amdgcn-amd-amdhsa--gfx950"')
E(".text")
E(".globl standalone__sliding_block_cached__decode_kernel")
E(".p2align 8")
E(".type standalone__sliding_block_cached__decode_kernel,@function")
E("standalone__sliding_block_cached__decode_kernel:")

SWS, SK, SV, SWO, SOUT, SX, SWQ = 4, 8, 12, 16, 20, 24, 28
S_TAG, S_WAVE, S_G, S_IDX = 90, 91, 92, 93
S_W8 = 3
M1, M2 = "s[94:95]", "s[96:97]"
T0, T1, T2, T3, T4, T5, T6 = ["s%d" % i for i in range(32, 39)]
def srd(base, ptr_lo, nbytes):
    E(f"  s_mov_b32 s{base}, s{ptr_lo}")
    E(f"  s_and_b32 s{base+1}, s{ptr_lo+1}, 0xffff")
    E(f"  s_mov_b32 s{base+2}, {nbytes}")
    E(f"  s_mov_b32 s{base+3}, 0x00020000")

E("  s_cmp_ge_u32 s2, 256")
E("  s_cbranch_scc1 L_end2")
E("  s_load_dwordx16 s[40:55], s[0:1], 0")
E("  v_lshrrev_b32 v1, 6, v0")
E("  v_and_b32 v0, 63, v0            ; lane")
E(f"  s_and_b32 s{S_G}, s2, 7")
E(f"  s_lshr_b32 s{S_IDX}, s2, 3")
E(f"  v_readfirstlane_b32 s{S_W8}, v1")
if STAMPS:
    E(f"  v_mov_b32 v{VST}, 0")
STAMP(0)
E("  s_waitcnt lgkmcnt(0)")
E(f"  s_load_dword s{S_TAG}, s[54:55], {WS_NONCE}")
E("  s_mov_b32 s88, s54")
E("  s_mov_b32 s89, s55")
srd(SX, 40, 1024)
srd(SK, 42, 67108864)
srd(SV, 44, 67108864)
srd(SWQ, 46, 4194304)
srd(SWO, 48, 4194304)
srd(SOUT, 50, 1024)
srd(SWS, 54, WS_SIZE)
E(f"  s_and_b32 s{S_WAVE}, s{S_W8}, 3")
def kaddr():
    E(f"  s_lshl_b32 {T3}, s{S_G}, 15")
    E(f"  s_add_u32 {T3}, {T3}, 28672")
    E(f"  s_lshl_b32 {T1}, s{S_IDX}, 7")
    E(f"  s_add_u32 {T3}, {T3}, {T1}")
    E(f"  s_lshl_b32 {T1}, s{S_WAVE}, 5")
    E(f"  s_add_u32 {T3}, {T3}, {T1}")
    E(f"  s_lshl_b32 {T3}, {T3}, 8")
    E("  v_and_b32 v122, 15, v0")
    E("  v_lshrrev_b32 v123, 4, v0")
    E("  v_lshlrev_b32 v122, 8, v122")
    E("  v_lshl_add_u32 v122, v123, 4, v122")
    E(f"  v_add_u32 v122, {T3}, v122")
    E(f"  s_movk_i32 {T1}, 0x1000")
KR = 16
def kload(n):
    tt, ks = n >> 2, n & 3
    so = "0" if tt == 0 else T1
    r = KR + (tt * 4 + ks) * 4
    E(f"  buffer_load_dwordx4 v[{r}:{r+3}], v122, s[{SK}:{SK+3}], {so} offen offset:{ks*64} {KVF}")
def tagcheck(regs, label_ok):
    E(f"  v_xor_b32 v56, s{S_TAG}, v{regs[0]}")
    for r in regs[1:]:
        E(f"  v_xor_b32 v57, s{S_TAG}, v{r}")
        E("  v_or_b32 v56, v56, v57")
    E("  v_cmp_ne_u32 vcc, 0, v56")
    E(f"  s_cbranch_vccz {label_ok}")

def qpoll(vt0, vt1, vt2):
    E(f"  s_lshl_b32 s98, s{S_G}, 11")
    E(f"  s_lshl_b32 s99, s{S_WAVE}, 9")
    E("  s_add_u32 s98, s98, s99")
    E(f"  s_add_u32 s98, s98, {WS_QP}")
    E(f"  s_lshr_b32 s99, s99, 1")
    E(f"  v_lshlrev_b32 v{vt0}, 2, v0")
    E(f"  v_add_u32 v{vt0}, s99, v{vt0}")
    E(f"  v_add_u32 v{vt0}, {LDS_Q}, v{vt0}")
    if NP < 32:
        E(f"  s_cmp_lt_u32 s{S_IDX}, {NP}")
        E(f"  s_cbranch_scc1 L_q_go")
        n = Q0
        while n > 0:
            E(f"  s_sleep {min(n, 127)}")
            n -= 127
    E("L_q_go:")
    E("  s_mov_b32 s99, 0")
    E("  s_mov_b32 s96, 0")
    E("L_q_loop:")
    for h in range(2):
        E(f"  s_bitcmp1_b32 s96, {h}")
        E(f"  s_cbranch_scc1 L_q_next{h}")
        for c in range(4):
            E(f"  s_add_u32 s97, s98, {h*256+c*64}")
            E(f"  s_load_dwordx16 s[{24+16*c}:{39+16*c}], s[88:89], s97 glc")
        E("  s_waitcnt lgkmcnt(0)")
        for c in range(4):
            b = 24 + 16 * c
            E(f"  s_xor_b32 vcc_lo, s{b+1}, s{S_TAG}")
            for j in range(1, 8):
                E(f"  s_xor_b32 vcc_hi, s{b+1+2*j}, s{S_TAG}")
                E("  s_or_b32 vcc_lo, vcc_lo, vcc_hi")
            E(f"  s_cbranch_scc1 L_q_next{h}")
        for j in range(32):
            E(f"  v_writelane_b32 v{vt1}, s{24+2*j}, {32*h+j}")
        E(f"  s_bitset1_b32 s96, {h}")
        E(f"L_q_next{h}:")
    E("  s_cmp_eq_u32 s96, 3")
    E("  s_cbranch_scc1 L_q_write")
    if QS:
        E(f"  s_sleep {QS}")
    E("  s_add_u32 s99, s99, 1")
    E(f"  s_cmp_lt_u32 s99, {NPOLL}")
    E("  s_cbranch_scc1 L_q_loop")
    E(f"  v_lshlrev_b32 v{vt2}, 3, v0")
    E(f"  v_add_u32 v{vt2}, s98, v{vt2}")
    E(f"  s_mov_b32 s99, {POLL_MAX}")
    E("L_q_fb:")
    E(f"  buffer_load_dwordx2 v[{vt1}:{vt1+1}], v{vt2}, s[{SWS}:{SWS+3}], 0 offen sc1")
    E("  s_waitcnt vmcnt(0)")
    E(f"  v_cmp_ne_u32 vcc, s{S_TAG}, v{vt1+1}")
    E("  s_cbranch_vccz L_q_write")
    E("  s_sleep 4")
    E("  s_sub_u32 s99, s99, 1")
    E("  s_cmp_lg_u32 s99, 0")
    E("  s_cbranch_scc1 L_q_fb")
    E("L_q_write:")
    E(f"  ds_write_b32 v{vt0}, v{vt1}")

E(f"  s_cmp_ge_u32 s{S_W8}, 4")
E("  s_cbranch_scc1 L_bwave")
E("L_awave:")
E("  s_setprio 3")
if NP < 32:
    E(f"  s_cmp_ge_u32 s{S_IDX}, {NP}")
    E("  s_cbranch_scc1 L_a_pre")
E(f"  v_lshrrev_b32 v112, {LOG[LS]}, v0")
E(f"  v_and_b32 v113, {LS-1}, v0")
E(f"  s_add_u32 {T0}, s{S_G}, 1")
E(f"  s_and_b32 {T0}, {T0}, 7")
E(f"  s_lshl_b32 {T0}, {T0}, 9")
E(f"  s_lshl_b32 {T1}, s{S_IDX}, {LOG[CP]}")
E(f"  s_add_u32 {T0}, {T0}, {T1}")
E(f"  s_lshl_b32 {T1}, s{S_WAVE}, 7")
E(f"  v_lshlrev_b32 v114, {LOG[NLD]}, v112")
E(f"  v_add_u32 v114, {T1}, v114          ; row0")
E("  v_lshlrev_b32 v115, 13, v114")
E("  v_lshl_add_u32 v115, v113, 4, v115")
E(f"  s_lshl_b32 {T2}, {T0}, 1")
E(f"  v_add_u32 v115, {T2}, v115")
E("  v_lshlrev_b32 v114, 1, v114")
WQ = 16
xl = {8: "dwordx4 v[120:123]", 4: "dwordx2 v[120:121]"}[NLD]
for i in range(NLD):
    if i == 0:
        so = "0"
    else:
        E(f"  s_mov_b32 {T1}, {i*8192}")
        so = T1
    E(f"  buffer_load_dwordx4 v[{WQ+4*i}:{WQ+4*i+3}], v115, s[{SWQ}:{SWQ+3}], {so} offen {WQF}")
    if i == 0:
        E(f"  buffer_load_{xl}, v114, s[{SX}:{SX+3}], 0 offen")
E("  v_lshrrev_b32 v116, 4, v0         ; R")
E("  v_lshl_add_u32 v116, v113, 3, v116")
E("  v_lshlrev_b32 v116, 2, v116")
E(f"  s_lshl_b32 {T1}, s{S_WAVE}, {LOG[CP]+2}")
E(f"  s_add_u32 {T1}, {T1}, {LDS_P1}")
E(f"  v_add_u32 v116, {T1}, v116")
E(f"  v_and_b32 v117, {NG-1}, v0")
E("  v_lshlrev_b32 v117, 3, v117         ; j*8")
E(f"  s_lshl_b32 {T1}, {T0}, 2")
E(f"  s_add_u32 {T1}, {T1}, {WS_QP}")
E(f"  v_add_u32 v118, {T1}, v117")
E(f"  v_and_b32 v119, {15 & ~(LS-1)}, v0")
E(f"  v_cmp_eq_u32 {M2}, 0, v119")
E("L_a_pre:")
E(f"  s_lshl_b32 {T0}, s{S_G}, 11")
E(f"  s_add_u32 {T0}, {T0}, {WS_QP}")
E("  v_lshlrev_b32 v60, 4, v0")
E(f"  v_add_u32 v60, {T0}, v60")
E("  v_lshrrev_b32 v61, 5, v0")
E(f"  v_mul_u32_u24 v61, {QST-256}, v61")
E("  v_lshl_add_u32 v61, v0, 3, v61")
E(f"  v_add_u32 v61, {LDS_Q}, v61")
E("  v_lshrrev_b32 v8, 4, v0         ; R")
E("  v_and_b32 v14, 7, v0")
E("  v_lshlrev_b32 v14, 3, v14       ; (l&7)*8")
E(f"  s_lshr_b32 {T0}, s{S_G}, 1")
E(f"  s_add_u32 {T0}, {T0}, 1")
E(f"  s_and_b32 {T0}, {T0}, 3")
E(f"  s_lshl_b32 {T0}, {T0}, 3")
E(f"  s_lshr_b32 {T2}, s{S_IDX}, 2")
E(f"  s_add_u32 {T2}, {T2}, {T0}         ; h3")
E(f"  s_and_b32 {T3}, s{S_IDX}, 3       ; quarter")
E(f"  s_and_b32 {T4}, s{S_G}, 1")
E(f"  s_xor_b32 {T4}, {T4}, 1")
E(f"  s_lshl_b32 {T5}, s{S_WAVE}, 1")
E(f"  s_add_u32 {T4}, {T4}, {T5}")
E("  v_and_b32 v3, 7, v0             ; c")
E("  v_lshrrev_b32 v2, 3, v0         ; rgrp")
E(f"  s_lshl_b32 {T0}, {T2}, 7")
E(f"  s_lshl_b32 {T1}, {T3}, 5")
E(f"  s_add_u32 {T0}, {T0}, {T1}")
E("  v_lshlrev_b32 v4, 2, v2")
E(f"  v_add_u32 v4, {T0}, v4           ; row0")
E("  v_lshlrev_b32 v5, 10, v4")
E("  v_lshl_add_u32 v5, v3, 4, v5")
E(f"  s_lshl_b32 {T1}, {T4}, 7")
E(f"  v_add_u32 v5, {T1}, v5")
E(f"  s_lshl_b32 {T0}, {T2}, 9")
E(f"  s_add_u32 {T0}, {T0}, {WS_ML}")
E("  v_and_b32 v9, 31, v0")
E("  v_lshlrev_b32 v9, 4, v9")
E(f"  v_add_u32 v9, {T0}, v9")
E(f"  s_lshl_b32 {T1}, s{S_WAVE}, 6")
E(f"  s_add_u32 {T1}, {T1}, {LDS_ML3}")
E("  v_lshlrev_b32 v12, 3, v2")
E(f"  v_add_u32 v12, {T1}, v12")
E("  v_and_b32 v59, 31, v0")
E("  v_lshlrev_b32 v59, 3, v59")
E(f"  v_add_u32 v59, {LDS_ML3}, v59")
E(f"  s_lshl_b32 {T0}, {T2}, 15")
E(f"  s_lshl_b32 {T1}, s{S_WAVE}, 13")
E(f"  s_add_u32 {T0}, {T0}, {T1}")
E(f"  s_lshl_b32 {T1}, {T3}, 8")
E(f"  s_add_u32 {T0}, {T0}, {T1}")
E(f"  s_add_u32 {T0}, {T0}, {WS_AP}")
E("  v_lshlrev_b32 v15, 10, v2")
E("  v_lshl_add_u32 v15, v14, 2, v15")
E(f"  v_add_u32 v15, {T0}, v15")
E("  v_lshlrev_b32 v13, 2, v8")
E("  v_lshl_add_u32 v13, v14, 1, v13")
E(f"  s_lshl_b32 {T1}, s{S_WAVE}, 7")
E(f"  s_add_u32 {T1}, {T1}, {LDS_O3}")
E(f"  v_add_u32 v13, {T1}, v13")
E("  v_and_b32 v4, 8, v0")
E(f"  v_cmp_eq_u32 {M1}, 0, v4")
E("  v_lshlrev_b32 v4, 4, v2")
E("  v_lshl_add_u32 v62, v3, 2, v8")
E("  v_lshlrev_b32 v62, 14, v62")
E(f"  s_lshl_b32 {T0}, {T4}, 11")
E(f"  s_lshr_b32 {T1}, s{S_G}, 1")
E(f"  s_lshl_b32 {T1}, {T1}, 5")
E(f"  s_add_u32 {T1}, {T1}, s{S_IDX}")
E(f"  s_lshl_b32 {T1}, {T1}, 4")
E(f"  s_add_u32 {T0}, {T0}, {T1}")
E(f"  s_add_u32 {T0}, {T0}, {WS_OP}")
E(f"  v_add_u32 v62, {T0}, v62")
E(f"  s_lshl_b32 {T0}, s2, 11")
E(f"  s_add_u32 {T0}, {T0}, {WS_OP}")
E("  v_lshlrev_b32 v1, 4, v0")
E(f"  v_add_u32 v1, {T0}, v1")

E("  s_waitcnt lgkmcnt(0)")
E(f"  s_add_u32 s{S_TAG}, s{S_TAG}, 1")
if NP < 32:
    E(f"  s_cmp_ge_u32 s{S_IDX}, {NP}")
    E("  s_cbranch_scc1 L_a_poll")
E(f"  s_waitcnt vmcnt({NLD-1})")
for k in range(NLD // 2):
    E(f"  v_lshlrev_b32 v{48+2*k}, 16, v{120+k}")
    E(f"  v_and_b32 v{49+2*k}, 0xffff0000, v{120+k}")
ACC = 64
for i in range(NLD):
    if i:
        E(f"  s_waitcnt vmcnt({NLD-1-i})")
    for k in range(4):
        w = WQ + 4 * i + k
        E(f"  v_lshlrev_b32 v{72+2*(k&1)}, 16, v{w}")
        E(f"  v_and_b32 v{73+2*(k&1)}, 0xffff0000, v{w}")
        op = "v_mul_f32" if i == 0 else "v_fmac_f32"
        E(f"  {op} v{ACC+2*k}, v{48+i}, v{72+2*(k&1)}")
        E(f"  {op} v{ACC+2*k+1}, v{48+i}, v{73+2*(k&1)}")
STAMP(1)
E("  s_nop 1")
steps = []
if LS <= 2: steps.append("quad_perm:[2,3,0,1]")
if LS <= 4: steps.append("row_ror:4")
steps.append("row_ror:8")
for stp in steps:
    for k in range(8):
        E(f"  v_add_f32_dpp v{ACC+k}, v{ACC+k}, v{ACC+k} {stp} row_mask:0xf bank_mask:0xf")
E("  s_nop 1")
for k in range(4):
    E(f"  v_permlane16_swap_b32 v{ACC+2*k}, v{ACC+2*k+1}")
E("  s_nop 1")
for k in range(4):
    E(f"  v_add_f32 v{ACC+2*k}, v{ACC+2*k}, v{ACC+2*k+1}")
E("  s_nop 1")
E(f"  v_permlane32_swap_b32 v{ACC}, v{ACC+2}")
E(f"  v_permlane32_swap_b32 v{ACC+4}, v{ACC+6}")
E("  s_nop 1")
E(f"  v_add_f32 v{ACC}, v{ACC}, v{ACC+2}")
E(f"  v_add_f32 v{ACC+4}, v{ACC+4}, v{ACC+6}")
E(f"  s_mov_b64 exec, {M2}")
E(f"  ds_write2_b32 v116, v{ACC}, v{ACC+4} offset0:0 offset1:4")
E("  s_mov_b64 exec, -1")
E("  s_waitcnt lgkmcnt(0)")
E("  s_barrier                        ; Bar1")
STAMP(9)
E(f"  s_cmp_lg_u32 s{S_WAVE}, 0")
E("  s_cbranch_scc1 L_p_nopub")
for wv in range(4):
    E(f"  ds_read_b64 v[{48+2*wv}:{49+2*wv}], v117 offset:{LDS_P1+wv*CP*4}")
E("  s_waitcnt lgkmcnt(0)")
for st in (1, 2):
    for wv in range(0, 4, 2 * st):
        E(f"  v_add_f32 v{48+2*wv}, v{48+2*wv}, v{48+2*(wv+st)}")
        E(f"  v_add_f32 v{49+2*wv}, v{49+2*wv}, v{49+2*(wv+st)}")
E("  v_cvt_pk_bf16_f32 v48, v48, v49")
E(f"  v_mov_b32 v49, s{S_TAG}")
E(f"  s_mov_b64 exec, {(1 << NG) - 1}")
E(f"  buffer_store_dwordx2 v[48:49], v118, s[{SWS}:{SWS+3}], 0 offen sc1")
E("  s_mov_b64 exec, -1")
E("L_p_nopub:")
E("  s_barrier")
STAMP(2)
E("L_a_poll:")
E(f"  s_cmp_lg_u32 s{S_WAVE}, 1")
E("  s_cbranch_scc1 L_a_noq")
def qissue(i):
    b = 64 + 8 * i
    E(f"  buffer_load_dwordx4 v[{b}:{b+3}], v60, s[{SWS}:{SWS+3}], 0 offen sc1")
    E(f"  buffer_load_dwordx4 v[{b+4}:{b+7}], v60, s[{SWS}:{SWS+3}], 0 offen offset:1024 sc1")
for i in range(4):
    E(f"  s_sleep {QSLEEP}")
    qissue(i)
E(f"  s_mov_b32 s99, {POLL_MAX}")
E("L_poll1:")
for i in range(4):
    b = 64 + 8 * i
    E("  s_waitcnt vmcnt(6)")
    tagcheck([b + 1, b + 3, b + 5, b + 7], f"L_q_ok{i}")
    qissue(i)
E("  s_sub_u32 s99, s99, 1")
E("  s_cmp_lg_u32 s99, 0")
E("  s_cbranch_scc1 L_poll1")
for i in range(4):
    b = 64 + 8 * i
    E(f"L_q_ok{i}:")
    E(f"  v_mov_b32 v{b+1}, v{b+2}")
    E(f"  v_mov_b32 v{b+5}, v{b+6}")
    E(f"  ds_write_b64 v61, v[{b}:{b+1}]")
    E(f"  ds_write_b64 v61, v[{b+4}:{b+5}] offset:{2*QST}")
    if i < 3:
        E("  s_branch L_q_done")
E("L_q_done:")
STAMP(7)
E("  s_waitcnt lgkmcnt(0)")
E("L_a_noq:")
E("  s_barrier                        ; BarQ")
XS = [10, 11, 6, 7]
ACC = 32
WO = 16
if WOLATE:
    E("  s_barrier                        ; BarC")
E(f"  buffer_load_dwordx4 v[{WO}:{WO+3}], v5, s[{SWO}:{SWO+3}], 0 offen {WOF}")
E(f"  buffer_load_dwordx4 v[{WO+4}:{WO+7}], v5, s[{SWO}:{SWO+3}], 0 offen offset:1024 {WOF}")
E(f"  buffer_load_dwordx4 v[{WO+8}:{WO+11}], v5, s[{SWO}:{SWO+3}], 0 offen offset:2048 {WOF}")
E(f"  buffer_load_dwordx4 v[{WO+12}:{WO+15}], v5, s[{SWO}:{SWO+3}], 0 offen offset:3072 {WOF}")
if not WOLATE:
    E("  s_barrier                        ; BarS")
    E("  s_barrier                        ; BarC")
STAMP(3)
def p2issue():
    E(f"  buffer_load_dwordx4 v[104:107], v15, s[{SWS}:{SWS+3}], 0 offen sc1")
    E(f"  buffer_load_dwordx4 v[108:111], v15, s[{SWS}:{SWS+3}], 0 offen offset:16 sc1")
E("  s_waitcnt vmcnt(0)")
WU = 64
for i in range(4):
    for k in range(4):
        w = WO + 4 * i + k
        E(f"  v_lshlrev_b32 v{WU+8*i+2*k}, 16, v{w}")
        E(f"  v_and_b32 v{WU+8*i+2*k+1}, 0xffff0000, v{w}")
E(f"  s_mov_b32 s99, {POLL_MAX}")
E(f"  s_cmp_lg_u32 s{S_WAVE}, 0")
E("  s_cbranch_scc1 L_ml_wait")
E("L_poll2a:")
E(f"  buffer_load_dwordx4 v[96:99], v9, s[{SWS}:{SWS+3}], 0 offen sc1")
E("  s_waitcnt vmcnt(0)")
tagcheck([97, 99], "L_poll2a_done")
if P2S:
    E(f"  s_sleep {P2S}")
E("  s_sub_u32 s99, s99, 1")
E("  s_cmp_lg_u32 s99, 0")
E("  s_cbranch_scc1 L_poll2a")
E("L_poll2a_done:")
E("  ds_write2_b32 v59, v96, v98 offset0:0 offset1:1")
E(f"  s_mov_b32 s99, {POLL_MAX}")
E("  s_waitcnt lgkmcnt(0)")
E("L_ml_wait:")
E("  s_barrier                        ; BarM")
if APD:
    E(f"  s_sleep {APD}")
p2issue()
E("  ds_read_b64 v[96:97], v59")
E("  ds_read_b32 v100, v12")
E("  s_waitcnt lgkmcnt(0)")
E("  v_max_f32_dpp v52, v96, v96 quad_perm:[1,0,3,2] row_mask:0xf bank_mask:0xf")
E("  s_nop 1")
E("  v_max_f32_dpp v52, v52, v52 quad_perm:[2,3,0,1] row_mask:0xf bank_mask:0xf")
E("  s_nop 1")
E("  v_max_f32_dpp v52, v52, v52 row_half_mirror row_mask:0xf bank_mask:0xf")
E("  s_nop 1")
E("  v_max_f32_dpp v52, v52, v52 row_mirror row_mask:0xf bank_mask:0xf")
E("  s_nop 0")
E("  v_mov_b32 v53, v52")
E("  s_nop 1")
E("  v_permlane16_swap_b32 v52, v53")
E("  s_nop 1")
E("  v_max_f32 v52, v52, v53         ; M")
E("  v_sub_f32 v54, v96, v52")
E("  v_sub_f32 v55, v100, v52")
E("  v_exp_f32 v54, v54")
E("  v_exp_f32 v55, v55")
E("  s_nop 0")
E("  v_mul_f32 v54, v54, v97")
E("  s_nop 1")
E("  v_add_f32_dpp v54, v54, v54 quad_perm:[1,0,3,2] row_mask:0xf bank_mask:0xf")
E("  s_nop 1")
E("  v_add_f32_dpp v54, v54, v54 quad_perm:[2,3,0,1] row_mask:0xf bank_mask:0xf")
E("  s_nop 1")
E("  v_add_f32_dpp v54, v54, v54 row_half_mirror row_mask:0xf bank_mask:0xf")
E("  s_nop 1")
E("  v_add_f32_dpp v54, v54, v54 row_mirror row_mask:0xf bank_mask:0xf")
E("  s_nop 0")
E("  v_mov_b32 v53, v54")
E("  s_nop 1")
E("  v_permlane16_swap_b32 v54, v53")
E("  s_nop 1")
E("  v_add_f32 v54, v54, v53         ; L")
E("  v_rcp_f32 v58, v54")
E("L_poll2:")
E("  s_waitcnt vmcnt(0)")
tagcheck([105, 107, 109, 111], "L_poll2_done")
p2issue()
E("  s_sub_u32 s99, s99, 1")
E("  s_cmp_lg_u32 s99, 0")
E("  s_cbranch_scc1 L_poll2")
E("  s_waitcnt vmcnt(0)")
E("L_poll2_done:")
STAMP(4)
E("  v_mul_f32 v48, v55, v104")
E("  v_mul_f32 v50, v55, v106")
E("  v_mul_f32 v46, v55, v108")
E("  v_mul_f32 v47, v55, v110")
E("  v_add_f32_dpp v48, v48, v48 row_ror:8 row_mask:0xf bank_mask:0xf")
E("  v_add_f32_dpp v50, v50, v50 row_ror:8 row_mask:0xf bank_mask:0xf")
E("  v_add_f32_dpp v46, v46, v46 row_ror:8 row_mask:0xf bank_mask:0xf")
E("  v_add_f32_dpp v47, v47, v47 row_ror:8 row_mask:0xf bank_mask:0xf")
E("  s_nop 0")
E("  v_permlane16_swap_b32 v48, v50")
E("  v_permlane16_swap_b32 v46, v47")
E("  s_nop 1")
E("  v_add_f32 v48, v48, v50")
E("  v_add_f32 v46, v46, v47")
E("  s_nop 1")
E("  v_permlane32_swap_b32 v48, v46")
E("  s_nop 1")
E("  v_add_f32 v48, v48, v46")
E(f"  s_mov_b64 exec, {M1}")
E("  ds_write_b32 v13, v48")
E("  s_mov_b64 exec, -1")
E("  s_waitcnt lgkmcnt(0)")
E("  s_barrier                        ; BarO")
for wv in range(4):
    E(f"  ds_read_b128 v[{40+4*wv}:{43+4*wv}], v4 offset:{LDS_O3+wv*128}")
E("  s_waitcnt lgkmcnt(0)")
for j in range(4):
    E(f"  v_add_f32 v{40+j}, v{40+j}, v{44+j}")
    E(f"  v_add_f32 v{48+j}, v{48+j}, v{52+j}")
for j in range(4):
    E(f"  v_add_f32 v{40+j}, v{40+j}, v{48+j}")
for j in range(4):
    E(f"  v_mul_f32 v{40+j}, v{40+j}, v58")
E("  v_cvt_pk_bf16_f32 v44, v40, v41")
E("  v_cvt_pk_bf16_f32 v45, v42, v43")
E("  v_lshlrev_b32 v10, 16, v44")
E("  v_and_b32 v11, 0xffff0000, v44")
E("  v_lshlrev_b32 v6, 16, v45")
E("  v_and_b32 v7, 0xffff0000, v45")
for i in range(4):
    for k in range(8):
        op = "v_mul_f32" if i == 0 else "v_fmac_f32"
        E(f"  {op} v{ACC+k}, v{XS[i]}, v{WU+8*i+k}")
E("  s_nop 0")
for k in range(8):
    E(f"  v_add_f32_dpp v{ACC+k}, v{ACC+k}, v{ACC+k} row_ror:8 row_mask:0xf bank_mask:0xf")
E("  s_nop 0")
for a_, b_ in ((0, 2), (1, 3), (4, 6), (5, 7)):
    E(f"  v_permlane16_swap_b32 v{ACC+a_}, v{ACC+b_}")
E("  s_nop 0")
for a_, b_ in ((0, 2), (1, 3), (4, 6), (5, 7)):
    E(f"  v_add_f32 v{ACC+a_}, v{ACC+a_}, v{ACC+b_}")
E("  s_nop 1")
E(f"  v_permlane32_swap_b32 v{ACC}, v{ACC+4}")
E(f"  v_permlane32_swap_b32 v{ACC+1}, v{ACC+5}")
E("  s_nop 1")
E(f"  v_add_f32 v{ACC}, v{ACC}, v{ACC+4}")
E(f"  v_add_f32 v{ACC+2}, v{ACC+1}, v{ACC+5}")
E(f"  v_mov_b32 v{ACC+1}, s{S_TAG}")
E(f"  v_mov_b32 v{ACC+3}, s{S_TAG}")
E(f"  s_mov_b64 exec, {M1}")
E(f"  buffer_store_dwordx4 v[{ACC}:{ACC+3}], v62, s[{SWS}:{SWS+3}], 0 offen sc1")
E("  s_mov_b64 exec, -1")
STAMP(5)
E(f"  s_cmp_lg_u32 s{S_WAVE}, 0")
E("  s_cbranch_scc1 L_end")
E(f"  s_lshl_b32 {T0}, s{S_G}, 7")
E(f"  s_lshl_b32 {T1}, s{S_IDX}, 2")
E(f"  s_add_u32 {T0}, {T0}, {T1}")
E(f"  v_mov_b32 v9, {T0}")
E(f"  s_mov_b32 s99, {POLL_MAX}")
if P3D:
    E(f"  s_sleep {P3D}")
if M3:
    E("  s_mov_b64 s[32:33], -1")
    E("  s_mov_b64 s[34:35], -1")
    E("L_poll3:")
    E("  s_mov_b64 exec, s[32:33]")
    E(f"  buffer_load_dwordx4 v[64:67], v1, s[{SWS}:{SWS+3}], 0 offen sc1")
    E("  s_mov_b64 exec, s[34:35]")
    E(f"  buffer_load_dwordx4 v[68:71], v1, s[{SWS}:{SWS+3}], 0 offen offset:1024 sc1")
    E("  s_mov_b64 exec, -1")
    E("  s_waitcnt vmcnt(0)")
    E(f"  v_xor_b32 v56, s{S_TAG}, v65")
    E(f"  v_xor_b32 v57, s{S_TAG}, v67")
    E("  v_or_b32 v56, v56, v57")
    E("  v_cmp_ne_u32 s[32:33], 0, v56")
    E(f"  v_xor_b32 v56, s{S_TAG}, v69")
    E(f"  v_xor_b32 v57, s{S_TAG}, v71")
    E("  v_or_b32 v56, v56, v57")
    E("  v_cmp_ne_u32 s[34:35], 0, v56")
    E("  s_nop 3")
    E("  s_or_b64 s[36:37], s[32:33], s[34:35]")
    E("  s_cbranch_scc0 L_poll3_done")
    if P3S:
        E(f"  s_sleep {P3S}")
    E("  s_sub_u32 s99, s99, 1")
    E("  s_cmp_lg_u32 s99, 0")
    E("  s_cbranch_scc1 L_poll3")
else:
    E("L_poll3:")
    E(f"  buffer_load_dwordx4 v[64:67], v1, s[{SWS}:{SWS+3}], 0 offen sc1")
    E(f"  buffer_load_dwordx4 v[68:71], v1, s[{SWS}:{SWS+3}], 0 offen offset:1024 sc1")
    E("  s_waitcnt vmcnt(0)")
    tagcheck([65, 67, 69, 71], "L_poll3_done")
    if P3S:
        E(f"  s_sleep {P3S}")
    E("  s_sub_u32 s99, s99, 1")
    E("  s_cmp_lg_u32 s99, 0")
    E("  s_cbranch_scc1 L_poll3")
E("L_poll3_done:")
STAMP(6)
E("  v_add_f32 v40, v64, v68")
E("  v_add_f32 v42, v66, v70")
E("  s_nop 1")
E("  v_permlane16_swap_b32 v40, v42")
E("  s_nop 1")
E("  v_add_f32 v40, v40, v42")
E("  v_mov_b32 v42, v40")
E("  s_nop 1")
E("  v_permlane32_swap_b32 v40, v42")
E("  s_nop 1")
E("  v_add_f32 v40, v40, v42")
E("  s_nop 1")
E("  v_add_f32_dpp v40, v40, v40 quad_perm:[1,0,3,2] row_mask:0xf bank_mask:0xf")
E("  s_nop 1")
E("  v_add_f32_dpp v40, v40, v40 quad_perm:[2,3,0,1] row_mask:0xf bank_mask:0xf")
E("  s_nop 1")
E("  v_add_f32_dpp v40, v40, v40 row_half_mirror row_mask:0xf bank_mask:0xf")
E("  s_nop 1")
E("  v_add_f32_dpp v40, v40, v40 row_mirror row_mask:0xf bank_mask:0xf")
E("  s_nop 1")
E(f"  v_readlane_b32 {T0}, v40, 16")
E(f"  v_mov_b32 v42, {T0}")
E("  v_cvt_pk_bf16_f32 v40, v40, v42")
E("  s_mov_b64 exec, 1")
E(f"  buffer_store_dword v40, v9, s[{SOUT}:{SOUT+3}], 0 offen")
E("  s_cmp_lg_u32 s2, 0")
E("  s_cbranch_scc1 L_a_nononce")
E(f"  v_mov_b32 v40, s{S_TAG}")
E(f"  v_mov_b32 v9, {WS_NONCE}")
E(f"  buffer_store_dword v40, v9, s[{SWS}:{SWS+3}], 0 offen sc1")
E("L_a_nononce:")
E("  s_mov_b64 exec, -1")
E("  s_branch L_end")
E("L_bwave:")
kaddr()
E(f"  s_mov_b32 {T0}, {T3}")
E("  v_and_b32 v2, 15, v0")
E("  v_lshrrev_b32 v3, 4, v0")
E("  v_lshlrev_b32 v5, 1, v3")
E("  v_xor_b32 v5, v5, v2")
E("  v_lshlrev_b32 v6, 8, v3")
E("  v_lshl_add_u32 v7, v5, 4, v6")
E(f"  v_add_u32 v7, {T0}, v7")
E("  v_xor_b32 v5, 8, v5")
E("  v_lshl_add_u32 v8, v5, 4, v6")
E(f"  v_add_u32 v8, {T0}, v8")
E("  v_add_u32 v8, 0x400, v8")
E(f"  s_lshl_b32 {T2}, s{S_WAVE}, 13")
def vload(i):
    E(f"  s_add_u32 m0, {T2}, {i*1024}")
    E(f"  s_movk_i32 {T3}, {(i>>1)*2048}")
    E(f"  buffer_load_dwordx4 v{7 + (i&1)}, s[{SV}:{SV+3}], {T3} offen {KVF} lds")
if BD:
    E(f"  s_sleep {BD}")
for n in range(KPRE):
    kload(n)
for n in range(VPRE):
    vload(n)
if NP < 32:
    E(f"  s_cmp_ge_u32 s{S_IDX}, {NP}")
    E("  s_cbranch_scc1 L_b_go")
E("  s_barrier                        ; Bar1")
E("  s_barrier                        ; Bar2")
E("L_b_go:")
for n in range(KPRE, 8):
    kload(n)
for n in range(VPRE, 8):
    vload(n)
STAMP(8)
E("  v_and_b32 v9, 3, v0")
E(f"  v_mul_u32_u24 v9, {QST}, v9")
E("  v_lshl_add_u32 v9, v3, 4, v9")
E(f"  v_add_u32 v9, {LDS_Q}, v9")
E("  v_lshrrev_b32 v10, 2, v2")
E("  v_lshl_add_u32 v10, v3, 2, v10")
E("  v_and_b32 v11, 7, v10")
E("  v_lshlrev_b32 v11, 5, v11")
E("  v_lshl_add_u32 v11, v10, 8, v11")
E("  v_and_b32 v12, 3, v0")
E("  v_lshl_add_u32 v11, v12, 3, v11")
E(f"  v_add_u32 v11, {T2}, v11")
E("  v_and_b32 v13, 3, v0")
E("  v_lshlrev_b32 v14, 3, v13")
E(f"  v_mul_u32_u24 v13, {HST}, v13")
E("  v_lshl_add_u32 v13, v3, 4, v13")
E(f"  s_mul_i32 {T1}, s{S_WAVE}, {4*HST}")
E(f"  s_add_u32 {T1}, {T1}, {LDS_OPART}")
E(f"  v_add_u32 v13, {T1}, v13")
E(f"  s_lshl_b32 {T1}, s{S_WAVE}, 5")
E(f"  s_add_u32 {T1}, {T1}, {LDS_MLP}")
E(f"  v_add_u32 v14, {T1}, v14")
E(f"  s_mul_i32 {T1}, s{S_WAVE}, {HST}")
E(f"  s_add_u32 {T1}, {T1}, {LDS_OPART}")
E("  v_lshlrev_b32 v15, 3, v0")
E(f"  v_add_u32 v15, {T1}, v15")
E(f"  s_lshl_b32 {T1}, s{S_G}, 2")
E(f"  s_add_u32 {T1}, {T1}, s{S_WAVE}")
E(f"  s_lshl_b32 {T1}, {T1}, 5")
E(f"  s_add_u32 {T1}, {T1}, s{S_IDX}     ; (g*4+b)*32 + split")
E(f"  s_lshl_b32 {T3}, {T1}, 10")
E(f"  s_add_u32 {T3}, {T3}, {WS_AP}")
E("  v_lshlrev_b32 v116, 4, v0")
E(f"  v_add_u32 v116, {T3}, v116")
E(f"  s_lshl_b32 {T3}, {T1}, 4")
E(f"  s_add_u32 {T3}, {T3}, {WS_ML}")
E(f"  v_mov_b32 v117, {T3}")
E(f"  s_lshl_b32 {T1}, s{S_WAVE}, 3")
E(f"  s_add_u32 {T1}, {T1}, {LDS_MLP}")
E(f"  v_mov_b32 v118, {T1}")
E(f"  v_cmp_gt_u32 {M1}, 4, v2")
E("  s_waitcnt lgkmcnt(0)")
E(f"  s_add_u32 s{S_TAG}, s{S_TAG}, 1")
E("  s_mov_b32 s32, 0x3db504f3       ; 128^-0.5 (f32)")
E("  s_mov_b32 s33, 0x3db504f3")
E("  s_mov_b32 s34, 0x3fb8aa3b       ; log2(e)")
E("  s_waitcnt lgkmcnt(0)")
E("  s_barrier                        ; BarQ")
STAMP(2)
QF = 48
for ks in range(4):
    E(f"  ds_read_b128 v[{QF+4*ks}:{QF+4*ks+3}], v9 offset:{ks*64}")
E("  s_waitcnt vmcnt(8)")
STAMP(1)
SC = 64
for ks in range(4):
    E(f"  s_waitcnt lgkmcnt({3-ks})")
    for tt in range(2):
        r = KR + (tt * 4 + ks) * 4
        c = "0" if ks == 0 else f"v[{SC+4*tt}:{SC+4*tt+3}]"
        E(f"  v_mfma_f32_16x16x32_bf16 v[{SC+4*tt}:{SC+4*tt+3}], v[{r}:{r+3}], v[{QF+4*ks}:{QF+4*ks+3}], {c}")
E("  s_nop 7")
E("  s_nop 3")
for j in range(4):
    E(f"  v_cvt_pk_bf16_f32 v{72+j}, v{SC+2*j}, v{SC+2*j+1}")
for j in range(4):
    E(f"  v_lshlrev_b32 v{SC+2*j}, 16, v{72+j}")
    E(f"  v_and_b32 v{SC+2*j+1}, 0xffff0000, v{72+j}")
for j in range(4):
    E(f"  v_pk_mul_f32 v[{SC+2*j}:{SC+2*j+1}], v[{SC+2*j}:{SC+2*j+1}], s[32:33]")
for j in range(4):
    E(f"  v_cvt_pk_bf16_f32 v{72+j}, v{SC+2*j}, v{SC+2*j+1}")
for j in range(4):
    E(f"  v_lshlrev_b32 v{SC+2*j}, 16, v{72+j}")
    E(f"  v_and_b32 v{SC+2*j+1}, 0xffff0000, v{72+j}")
E(f"  v_max3_f32 v76, v{SC}, v{SC+1}, v{SC+2}")
E(f"  v_max3_f32 v77, v{SC+3}, v{SC+4}, v{SC+5}")
E(f"  v_max3_f32 v76, v76, v{SC+6}, v{SC+7}")
E("  v_max_f32 v76, v76, v77")
E("  v_mov_b32 v77, v76")
E("  s_nop 1")
E("  v_permlane16_swap_b32 v76, v77")
E("  s_nop 1")
E("  v_max_f32 v76, v76, v77")
E("  v_mov_b32 v77, v76")
E("  s_nop 1")
E("  v_permlane32_swap_b32 v76, v77")
E("  s_nop 1")
E("  v_max_f32 v76, v76, v77")
E("  v_mul_f32 v76, s34, v76")
for j in range(8):
    E(f"  v_fma_f32 v{SC+j}, v{SC+j}, s34, -v76")
for j in range(8):
    E(f"  v_exp_f32 v{SC+j}, v{SC+j}")
E("  s_nop 0")
for j in range(4):
    E(f"  v_cvt_pk_bf16_f32 v{72+j}, v{SC+2*j}, v{SC+2*j+1}")
E(f"  v_add_f32 v77, v{SC}, v{SC+1}")
E(f"  v_add_f32 v78, v{SC+2}, v{SC+3}")
E(f"  v_add_f32 v79, v{SC+4}, v{SC+5}")
E(f"  v_add_f32 v80, v{SC+6}, v{SC+7}")
E("  v_add_f32 v77, v77, v78")
E("  v_add_f32 v79, v79, v80")
E("  v_add_f32 v77, v77, v79")
E("  v_mov_b32 v78, v77")
E("  s_nop 1")
E("  v_permlane16_swap_b32 v77, v78")
E("  s_nop 1")
E("  v_add_f32 v77, v77, v78")
E("  v_mov_b32 v78, v77")
E("  s_nop 1")
E("  v_permlane32_swap_b32 v77, v78")
E("  s_nop 1")
E("  v_add_f32 v77, v77, v78         ; l_w")
E(f"  s_mov_b64 exec, {M1}")
E("  ds_write_b64 v14, v[76:77]")
E("  s_mov_b64 exec, -1")
for t in range(8):
    E(f"  v_xor_b32 v{48+t}, {t*32}, v11")
STAMP(3)
E("  s_waitcnt lgkmcnt(0)")
E("  s_barrier                        ; BarS")
for wv in range(4):
    E(f"  ds_read_b64 v[{56+2*wv}:{57+2*wv}], v118 offset:{wv*32}")
E(f"  v_mov_b32 v81, s{S_TAG}")
E(f"  v_mov_b32 v83, s{S_TAG}")
E("  s_waitcnt vmcnt(0) lgkmcnt(0)")
STAMP(4)
VF = 84
for t in range(8):
    E(f"  ds_read_b64_tr_b16 v[{VF+4*t}:{VF+4*t+1}], v{48+t}")
    E(f"  ds_read_b64_tr_b16 v[{VF+4*t+2}:{VF+4*t+3}], v{48+t} offset:4096")
E("  v_max3_f32 v80, v56, v58, v60")
E("  v_max_f32 v80, v80, v62         ; M")
for wv in range(4):
    E(f"  v_sub_f32 v{120+wv}, v{56+2*wv}, v80")
for wv in range(4):
    E(f"  v_exp_f32 v{120+wv}, v{120+wv}")
E("  s_nop 0")
E("  v_mul_f32 v82, v120, v57")
for wv in range(1, 4):
    E(f"  v_fmac_f32 v82, v{120+wv}, v{57+2*wv}")
E("  s_mov_b64 exec, 1")
E(f"  buffer_store_dwordx4 v[80:83], v117, s[{SWS}:{SWS+3}], 0 offen sc1")
E("  s_mov_b64 exec, -1")
OA = 16
for t in range(8):
    E(f"  s_waitcnt lgkmcnt({14-2*t})")
    E(f"  v_mfma_f32_16x16x32_bf16 v[{OA+4*t}:{OA+4*t+3}], v[{VF+4*t}:{VF+4*t+3}], v[72:75], 0")
E(f"  s_mov_b64 exec, {M1}")
E("  s_nop 7")
E("  s_nop 3")
for t in range(8):
    E(f"  ds_write_b128 v13, v[{OA+4*t}:{OA+4*t+3}] offset:{64*t}")
E("  s_mov_b64 exec, -1")
E("  s_waitcnt lgkmcnt(0)")
E("  s_barrier                        ; BarC")
STAMP(5)
for wv in range(4):
    E(f"  ds_read_b64 v[{56+2*wv}:{57+2*wv}], v15 offset:{wv*4*HST}")
E(f"  v_mov_b32 v41, s{S_TAG}")
E(f"  v_mov_b32 v43, s{S_TAG}")
E("  s_waitcnt lgkmcnt(0)")
E("  v_mul_f32 v40, v120, v56")
E("  v_mul_f32 v42, v120, v57")
for wv in range(1, 4):
    E(f"  v_fmac_f32 v40, v{120+wv}, v{56+2*wv}")
    E(f"  v_fmac_f32 v42, v{120+wv}, v{57+2*wv}")
E(f"  buffer_store_dwordx4 v[40:43], v116, s[{SWS}:{SWS+3}], 0 offen sc1")

E("L_end:")
if STAMPS:
    STAMP(15)
    E("  s_mov_b64 exec, -1")
    E(f"  s_lshl_b32 {T0}, s2, 3")
    E(f"  s_add_u32 {T0}, {T0}, s{S_W8}")
    E(f"  s_lshl_b32 {T0}, {T0}, 6")
    E(f"  s_add_u32 {T0}, {T0}, {WS_STAMP}")
    E("  v_lshlrev_b32 v9, 2, v0")
    E(f"  v_add_u32 v9, {T0}, v9")
    E("  s_mov_b64 exec, 0xffff")
    E(f"  buffer_store_dword v{VST}, v9, s[{SWS}:{SWS+3}], 0 offen")
E("L_end2:")
E("  s_endpgm")
E('.section .rodata,"a"')
E(".p2align 6")
E(".amdhsa_kernel standalone__sliding_block_cached__decode_kernel")
E("  .amdhsa_next_free_vgpr 128")
E("  .amdhsa_next_free_sgpr 102")
E("  .amdhsa_accum_offset 128")
E("  .amdhsa_group_segment_fixed_size 0")
E("  .amdhsa_kernarg_size 64")
E("  .amdhsa_user_sgpr_count 2")
E("  .amdhsa_user_sgpr_kernarg_segment_ptr 1")
E("  .amdhsa_system_sgpr_workgroup_id_x 1")
E(".end_amdhsa_kernel")
open(OUT, "w").write("\n".join(L) + "\n")
print("wrote", OUT, len(L), "lines")
```
